```python
import torch

def _softmax(x, axis=-1):
    return torch.softmax(x, dim=axis)
def _gelu(x):
    return torch.nn.functional.gelu(x, approximate="tanh")
def _silu(x):
    return torch.nn.functional.silu(x)
def _sigmoid(x):
    return torch.sigmoid(x)
def _layernorm(x, axis=-1, eps=1e-5):
    m = x.mean(dim=axis, keepdim=True)
    v = x.var(dim=axis, keepdim=True, unbiased=False)
    return (x - m) / torch.sqrt(v + eps)
def _scatter_add(tgt, idx, src, axis=0):
    return tgt.clone().index_add_(axis, idx, src)
def _segment_sum(src, seg, n):
    out = torch.zeros((n,) + src.shape[1:], dtype=src.dtype)
    return out.index_add_(0, seg, src)
def _pad(x, pw):
    flat = tuple(v for pair in reversed(pw) for v in pair)
    return torch.nn.functional.pad(x, flat)

kernel_name = 'standalone__mha_block_cached__near_ridge'

def setup_inputs():

    _w = (lambda a: (lambda t: t.to(torch.bfloat16) if t.is_floating_point() else t)(torch.as_tensor(a)))
    B, Sq, D = 8, 240, 576
    H, Sk, Dh = 32, 2048, 128
    return {
        "x": _w((lambda *s: torch.randn(*s, dtype=torch.bfloat16) * 0.8)(B, Sq, D)),
        "k_cache": _w((lambda *s: torch.randn(*s, dtype=torch.bfloat16) * 0.8)(B, H, Sk, Dh)),
        "v_cache": _w((lambda *s: torch.randn(*s, dtype=torch.bfloat16) * 0.05)(B, H, Sk, Dh)),
        "wq": _w((lambda *s: torch.randn(*s, dtype=torch.bfloat16) * 0.8)(D, H * Dh) * (D ** -0.5)),
        "wo": _w((lambda *s: torch.randn(*s, dtype=torch.bfloat16) * 0.05)(H * Dh, D) * ((H * Dh) ** -0.5)),
    }

def reference(x, k_cache, v_cache, wq, wo):
    B, Sq, D = x.shape
    H, Dh = 32, 128
    q = (lambda x, *d: x.permute(*d))((x @ wq).reshape(B, Sq, H, Dh), 0, 2, 1, 3)
    scores = torch.einsum("bhqd,bhkd->bhqk", q, k_cache) * (Dh ** -0.5)
    p = _softmax(scores, axis=-1)
    o = torch.einsum("bhqk,bhkd->bhqd", p, v_cache)
    return (lambda x, *d: x.permute(*d))(o, 0, 2, 1, 3).reshape(B, Sq, H * Dh) @ wo
```

```python
class Asm:
    def __init__(self):
        self.lines = []
    def __call__(self, s):
        self.lines.append("    " + s)
    def label(self, l):
        self.lines.append(l + ":")
    def raw(self, s):
        self.lines.append(s)
    def c(self, s):
        self.lines.append("    ; " + s)
    def text(self):
        return "\n".join(self.lines) + "\n"

def v(n, cnt=1):
    return f"v{n}" if cnt == 1 else f"v[{n}:{n+cnt-1}]"
def a(n, cnt=1):
    return f"a{n}" if cnt == 1 else f"a[{n}:{n+cnt-1}]"
def s(n, cnt=1):
    return f"s{n}" if cnt == 1 else f"s[{n}:{n+cnt-1}]"

HEADER = """; Kernarg layout (64 bytes, ptrs only, base s[0:1]):
"""

def kernel_begin(A, name):
    A.raw(".text")
    A.raw(f".globl {name}")
    A.raw(".p2align 8")
    A.raw(f".type {name},@function")
    A.label(name)

def kernel_desc(A, name, vgpr, accum, sgpr=102):
    A.raw('.section .rodata,"a"')
    A.raw(".p2align 6")
    A.raw(f".amdhsa_kernel {name}")
    A.raw(f"  .amdhsa_next_free_vgpr {vgpr}")
    A.raw(f"  .amdhsa_next_free_sgpr {sgpr}")
    A.raw(f"  .amdhsa_accum_offset {accum}")
    A.raw("  .amdhsa_group_segment_fixed_size 0")
    A.raw("  .amdhsa_kernarg_size 64")
    A.raw("  .amdhsa_user_sgpr_count 2")
    A.raw("  .amdhsa_user_sgpr_kernarg_segment_ptr 1")
    A.raw("  .amdhsa_system_sgpr_workgroup_id_x 1")
    A.raw("  .amdhsa_float_denorm_mode_32 3")
    A.raw(".end_amdhsa_kernel")
```

```python
from asmlib import *
K2 = 'oproj_kernel'
LDS = 4*21760
VGPR = 272
ACCUM = 160
NWG = 216
VLANE, VTID = 0, 1
VBO = 2
VWD = 3
VAR = 4
VT = 8
BF = 32
AF = 0
ACC = 32
SRD_O, SRD_WO, SRD_OUT = 8, 12, 16
DEPTH = 3

def gen(A, opt):
    NT = opt.get("k2nt", "")
    stamps = opt.get("stamps", False)
    kernel_begin(A, K2)
    A(f"s_cmp_ge_u32 s2, {NWG}")
    A("s_cbranch_scc1 L2_done")
    A("s_load_dwordx4 s[36:39], s[0:1], 32")
    A("s_load_dwordx2 s[40:41], s[0:1], 56")
    if stamps: A("s_memrealtime s[60:61]")
    A(f"v_and_b32 v{VLANE}, 63, v0") if False else None
    A(f"v_mov_b32 v{VTID}, v0")
    A(f"v_lshrrev_b32 v{VT}, 6, v0")
    A(f"v_and_b32 v{VLANE}, 63, v0")
    A("s_and_b32 s46, s2, 7")
    A("s_lshr_b32 s47, s2, 3")
    A(f"v_readfirstlane_b32 s3, v{VT}")
    A("s_mul_i32 s48, s47, 57")
    A("s_lshr_b32 s48, s48, 9")
    A("s_mul_i32 s49, s48, 9")
    A("s_sub_u32 s33, s47, s49")
    A("s_mul_i32 s46, s46, 3")
    A("s_add_u32 s32, s46, s48")
    L = VLANE
    t0, t1, t2, t3, t4 = VT, VT+1, VT+2, VT+3, VT+4
    A(f"v_lshlrev_b32 v{VBO}, 4, v{L}")
    A(f"v_lshrrev_b32 v{t0}, 3, v{L}")
    A(f"v_mul_u32_u24 v{t0}, 1152, v{t0}")
    A(f"v_lshrrev_b32 v{t1}, 4, v{L}")
    A(f"v_lshlrev_b32 v{t2}, 1, v{t1}")
    A(f"v_and_b32 v{t3}, 7, v{L}")
    A(f"v_xor_b32 v{t3}, v{t3}, v{t2}")
    A(f"v_lshl_add_u32 v{VWD}, v{t3}, 4, v{t0}")
    A(f"v_bfe_u32 v{t0}, v{L}, 2, 2")
    A(f"v_and_b32 v{t2}, 1, v{t1}")
    A(f"v_lshrrev_b32 v{t3}, 1, v{t1}")
    A(f"v_lshlrev_b32 v{t4}, 4, v{t3}")
    A(f"v_lshl_add_u32 v{t4}, v{t2}, 2, v{t4}")
    A(f"v_add_u32 v{t4}, v{t4}, v{t0}")
    A(f"v_lshrrev_b32 v{t3}, 1, v{t0}")
    A(f"v_lshl_add_u32 v{t3}, v{t2}, 1, v{t3}")
    A(f"v_lshlrev_b32 v{t3}, 1, v{t3}")
    A(f"v_bfe_u32 v{t2}, v{L}, 1, 1")
    A(f"v_and_b32 v{t1}, 1, v{L}")
    A(f"s_lshl_b32 s34, s3, 14")
    for nt in range(4):
        A(f"v_add_u32 v{VT+5}, {2*nt}, v{t2}")
        A(f"v_xor_b32 v{VT+5}, v{VT+5}, v{t3}")
        A(f"v_lshlrev_b32 v{VT+5}, 4, v{VT+5}")
        A(f"v_lshl_add_u32 v{VT+5}, v{t1}, 3, v{VT+5}")
        A(f"v_lshl_add_u32 v{VT+5}, v{t4}, 7, v{VT+5}")
        A(f"v_add_u32 v{VAR+nt}, s34, v{VT+5}")
    A("s_waitcnt lgkmcnt(0)")
    A("s_mul_i32 s46, s32, 655360")
    A("s_lshl_b32 s47, s3, 15")
    A("s_add_u32 s46, s46, s47")
    A(f"s_add_u32 s{SRD_O}, s40, s46")
    A(f"s_addc_u32 s{SRD_O+1}, s41, 0")
    A(f"s_sub_u32 s{SRD_O+2}, {120*131072}, s46")
    A(f"s_mov_b32 s{SRD_O+3}, 0x20000")
    A("s_mul_i32 s46, s3, 1179648")
    A("s_lshl_b32 s47, s33, 7")
    A("s_add_u32 s46, s46, s47")
    A(f"s_add_u32 s{SRD_WO}, s36, s46")
    A(f"s_addc_u32 s{SRD_WO+1}, s37, 0")
    A(f"s_sub_u32 s{SRD_WO+2}, {4096*1152}, s46")
    A(f"s_mov_b32 s{SRD_WO+3}, 0x20000")
    A(f"s_mov_b32 s{SRD_OUT}, s38")
    A(f"s_mov_b32 s{SRD_OUT+1}, s39")
    A(f"s_mov_b32 s{SRD_OUT+2}, {1920*1152}")
    A(f"s_mov_b32 s{SRD_OUT+3}, 0x20000")
    A("s_mov_b32 s28, 0")
    A("s_mov_b32 s29, 0")
    def loads(slot):
        ops = []
        for p in range(4):
            ops.append(([f"s_add_u32 m0, s34, {slot*4096 + p*1024}", f"s_add_u32 s46, s29, {p*9216}"],
                        f"buffer_load_dwordx4 v{VWD}, s[{SRD_WO}:{SRD_WO+3}], s46 offen {NT} lds"))
        for mt in range(5):
            r = BF + slot*20 + mt*4
            ops.append(([f"s_add_u32 s47, s28, {mt*131072}"],
                        f"buffer_load_dwordx4 v[{r}:{r+3}], v{VBO}, s[{SRD_O}:{SRD_O+3}], s47 offen {NT}"))
        ops.append((["s_add_u32 s28, s28, 1024", "s_add_u32 s29, s29, 36864"], None))
        return ops
    def emit(ops):
        for p_, ld in ops:
            for x in p_: A(x)
            if ld: A(ld)
    def areads(slot, buf):
        ops = []
        for nt in range(4):
            for t in range(2):
                r = AF + buf*16 + nt*4 + 2*t
                ops.append(f"ds_read_b64_tr_b16 a[{r}:{r+1}], v{VAR+nt} offset:{slot*4096 + t*1024}")
        return ops
    for s_ in range(DEPTH): emit(loads(s_))
    for i in range(80): A(f"v_accvgpr_write_b32 a{ACC+i}, 0")
    A(f"s_waitcnt vmcnt({9*(DEPTH-1)})")
    if stamps: A("s_memrealtime s[62:63]")
    for x in areads(0, 0): A(x)
    A("s_mov_b32 s30, 0")
    A.label("L2_loop")
    for u in range(4):
        buf = u & 1
        mf = []
        for nt in range(4):
            for mt in range(5):
                acc = ACC + (mt*4 + nt)*4
                b = BF + u*20 + mt*4
                mf.append(f"v_mfma_f32_16x16x32_bf16 a[{acc}:{acc+3}], a[{AF+buf*16+nt*4}:{AF+buf*16+nt*4+3}], v[{b}:{b+3}], a[{acc}:{acc+3}]")
        A(f"s_waitcnt vmcnt({9*(DEPTH-2)}) lgkmcnt(0)")
        rd = areads((u+1) % 4, buf ^ 1)
        ld = loads((u + DEPTH) % 4)
        pre = [[] for _ in range(20)]
        for i_, x in enumerate(rd): pre[i_].append(x)
        g = 8
        for p_, l_ in ld:
            pre[g] += p_
            if l_: pre[g+1 if g+1 < 20 else g].append(l_)
            g = min(g + 1, 18)
        for m, p_ in zip(mf, pre):
            A(m)
            for x in p_: A(x)
    A("s_add_u32 s30, s30, 1")
    A("s_cmp_lt_u32 s30, 8")
    A("s_cbranch_scc1 L2_loop")
    if stamps: A("s_memrealtime s[64:65]")
    A("s_waitcnt vmcnt(0) lgkmcnt(0)")
    A("s_barrier")
    A(f"v_and_b32 v{t0}, 15, v{L}")
    A(f"v_lshrrev_b32 v{t1}, 4, v{L}")
    A(f"v_mul_u32_u24 v{t0}, 272, v{t0}")
    A(f"v_lshl_add_u32 v{t0}, v{t1}, 4, v{t0}")
    A(f"s_mul_i32 s46, s3, 21760")
    A(f"v_add_u32 v{t0}, s46, v{t0}")
    A("s_nop 7")
    for mt in range(5):
        for nt in range(4):
            acc = ACC + (mt*4 + nt)*4
            A(f"ds_write_b128 v{t0}, a[{acc}:{acc+3}] offset:{mt*16*272 + nt*64}")
    A("s_waitcnt lgkmcnt(0)")
    A("s_barrier")
    for i in range(3):
        A(f"v_add_u32 v{t0}, {256*i}, v{VTID}")
        A(f"v_lshrrev_b32 v{t1}, 3, v{t0}")
        A(f"v_and_b32 v{t2}, 7, v{t0}")
        A(f"v_mul_u32_u24 v{t3}, 272, v{t1}")
        A(f"v_lshl_add_u32 v{t3}, v{t2}, 5, v{t3}")
        if i == 2:
            A(f"v_min_u32 v{t3}, {79*272+7*32}, v{t3}")
        R = 32 + i*40
        for w in range(4):
            A(f"ds_read_b128 v[{R+w*8}:{R+w*8+3}], v{t3} offset:{w*21760}")
            A(f"ds_read_b128 v[{R+w*8+4}:{R+w*8+7}], v{t3} offset:{w*21760+16}")
        A("s_mul_i32 s46, s32, 80")
        A(f"v_add_u32 v{t4}, s46, v{t1}")
        A(f"v_mul_u32_u24 v{t4}, 1152, v{t4}")
        A(f"v_lshl_add_u32 v{t4}, v{t2}, 4, v{t4}")
        A("s_lshl_b32 s47, s33, 7")
        A(f"v_add_u32 v{VT+8+i}, s47, v{t4}")
        if i == 2:
            A(f"v_cmp_gt_u32 vcc, 80, v{t1}")
            A(f"v_mov_b32 v{t4}, 0x7ff00000")
            A("s_nop 0")
            A(f"v_cndmask_b32 v{VT+8+i}, v{t4}, v{VT+8+i}, vcc")
    for i in range(3):
        R = 32 + i*40
        A(f"s_waitcnt lgkmcnt({8*(2-i) if 8*(2-i) <= 15 else 15})") if False else None
    A("s_waitcnt lgkmcnt(0)")
    for i in range(3):
        R = 32 + i*40
        for k in range(8):
            A(f"v_add_f32 v{R+k}, v{R+k}, v{R+8+k}")
            A(f"v_add_f32 v{R+16+k}, v{R+16+k}, v{R+24+k}")
        for k in range(8):
            A(f"v_add_f32 v{R+k}, v{R+k}, v{R+16+k}")
        for k in range(4):
            A(f"v_cvt_pk_bf16_f32 v{R+32+k}, v{R+2*k}, v{R+2*k+1}")
        A(f"buffer_store_dwordx4 v[{R+32}:{R+35}], v{VT+8+i}, s[{SRD_OUT}:{SRD_OUT+3}], 0 offen")
    if stamps:
        A("s_waitcnt vmcnt(0)")
        A("s_memrealtime s[66:67]")
        A("s_waitcnt lgkmcnt(0)")
        A("s_cmp_lg_u32 s3, 0")
        A("s_cbranch_scc1 L2_done")
        A("s_mov_b32 s20, s40")
        A("s_mov_b32 s21, s41")
        A("s_mov_b32 s22, 0x20000000")
        A("s_mov_b32 s23, 0x20000")
        for i_, r in enumerate([60, 62, 64, 66]):
            A(f"v_mov_b32 v{4+i_}, s{r}")
        A("s_lshl_b32 s46, s2, 4")
        A("s_add_u32 s46, s46, 0x1010000")
        A("v_mov_b32 v8, s46")
        A(f"v_cmp_eq_u32 vcc, 0, v{VLANE}")
        A("s_and_saveexec_b64 s[48:49], vcc")
        A("s_cbranch_execz L2_done")
        A("buffer_store_dwordx4 v[4:7], v8, s[20:23], 0 offen")
    A.label("L2_done")
    A("s_endpgm")
```

```python
import sys, math
from asmlib import *

K1 = 'attn_kernel'
K2 = 'oproj_kernel'

SCALE = (128 ** -0.5) * math.log2(math.e)
import struct
def f2u(x): return struct.unpack("<I", struct.pack("<f", x))[0]

KRING, VRING = 0, 65536
XST = [32768, 98304]
WST = [131072, 147456]
LDS_K1 = 163840

SBUF = [0, 32]
PBUF = [64, 80]
NEGM = 96
QF = 128
VKR = 192
VVR = 200
VKD = 204
VVD = 206
VL = 207
VLANE = 209
VXR = 210
VWR = 214
VXD = 218
VWD = 220
VT = 222
OACC = 0
KF = 128
VF = 160
XF = 192
WF = 208
S_W = 3
SRD_K, SRD_V, SRD_X, SRD_W, SRD_O = 8, 12, 16, 20, 24
S_KOFF, S_VOFF, S_GRP, S_WB = 28, 29, 30, 31
S_B, S_H = 32, 33
S_T = 36

class VmTracker:
    def __init__(self): self.q = []
    def issue(self, tag): self.q.append(tag)
    def need(self, tags):
        last = -1
        for i, t in enumerate(self.q):
            if t in tags: last = i
        assert last >= 0 or not tags, tags
        return min(63, len(self.q) - 1 - last)

def mfma32(d, a_, b_, c):
    return f"v_mfma_f32_32x32x16_bf16 {d}, {a_}, {b_}, {c}"

def emit_gaps(A, mf, pre, valu, waits=None):
    for g, m in enumerate(mf):
        if waits and g in waits:
            for x in waits[g]: A(x)
        A(m)
        for x in pre[g]: A(x)
        for x in valu[g]: A(x)

def softmax_valu(e, G):
    S, P = SBUF[e], PBUF[e]
    ex = lambda i: f"v_exp_f32 v{S+i}, v{S+i}"
    ad = lambda i: f"v_add_f32 v{VL + i//16}, v{VL + i//16}, v{S+i}"
    cv = lambda i: f"v_cvt_pk_bf16_f32 v{P + i//2}, v{S+i}, v{S+i+1}"
    valu = [[] for _ in range(G)]
    tail = []
    if G == 32:
        valu[0] = [ex(0), ex(1)]
        valu[1] = [ad(0), ad(1), cv(0), ex(2)]
        for g in range(2, 31):
            valu[g].append(ad(g))
            if g % 2 == 1: valu[g].append(cv(g - 1))
            valu[g].append(ex(g + 1))
        valu[31] = [ad(31), cv(30)]
    elif G == 16:
        for g in range(16):
            if g > 0:
                valu[g] += [ad(2*g-2), ad(2*g-1), cv(2*g-2)]
            valu[g] += [ex(2*g), ex(2*g+1)]
        tail = ["s_nop 0", ad(30), ad(31), cv(30)]
    return valu, tail

def gen_k1(A, opt):
    NT = opt.get("nt", "nt")
    LV, LK = opt.get("lv", 6), opt.get("lv", 6) + 3
    stamps = opt.get("stamps", False)
    vm = VmTracker()
    kernel_begin(A, K1)
    A("s_cmp_ge_u32 s2, 256")
    A("s_cbranch_scc1 L1_done")
    A("s_load_dwordx8 s[36:43], s[0:1], 0")
    A("s_load_dwordx2 s[44:45], s[0:1], 56")
    if stamps:
        A("s_memrealtime s[60:61]")
    A(f"v_and_b32 v{VLANE}, 63, v0")
    A(f"v_lshrrev_b32 v{VT}, 6, v0")
    A("s_and_b32 s46, s2, 7")
    A("s_lshr_b32 s47, s2, 3")
    A(f"v_readfirstlane_b32 s{S_W}, v{VT}")
    A("s_and_b32 s48, s46, 1")
    A("s_lshl_b32 s48, s48, 2")
    A("s_and_b32 s49, s47, 3")
    A(f"s_add_u32 s{S_B}, s48, s49")
    A("s_lshr_b32 s48, s46, 1")
    A("s_lshl_b32 s48, s48, 3")
    A("s_lshr_b32 s49, s47, 2")
    A(f"s_add_u32 s{S_H}, s48, s49")
    A(f"s_lshl_b32 s{S_WB}, s{S_W}, 11")
    L = VLANE
    t0, t1, t2, t3, t4, t5 = VT, VT+1, VT+2, VT+3, VT+4, VT+5
    A(f"v_lshrrev_b32 v{t0}, 3, v{L}")
    A(f"s_lshl_b32 s46, s{S_W}, 6")
    A(f"v_add_u32 v{t0}, s46, v{t0}")
    A(f"v_mul_u32_u24 v{t0}, 1152, v{t0}")
    A(f"v_and_b32 v{t1}, 7, v{L}")
    A(f"v_lshrrev_b32 v{t2}, 4, v{L}")
    A(f"v_xor_b32 v{t3}, v{t1}, v{t2}")
    A(f"v_lshl_add_u32 v{VXD}, v{t3}, 4, v{t0}")
    A(f"v_xor_b32 v{t3}, 4, v{t3}")
    A(f"v_lshl_add_u32 v{VXD+1}, v{t3}, 4, v{t0}")
    A(f"v_and_b32 v{t1}, 15, v{L}")
    A(f"v_lshlrev_b32 v{t3}, 2, v{t2}")
    A(f"v_xor_b32 v{t3}, v{t1}, v{t3}")
    A(f"s_lshl_b32 s46, s{S_W}, 4")
    A(f"v_add_u32 v{t4}, s46, v{t2}")
    A(f"v_lshlrev_b32 v{t4}, 13, v{t4}")
    A(f"v_lshl_add_u32 v{VWD}, v{t3}, 4, v{t4}")
    A(f"s_lshl_b32 s46, s{S_W}, 3")
    A(f"v_add_u32 v{t4}, s46, v{t2}")
    A(f"v_lshlrev_b32 v{t5}, 8, v{t4}")
    A(f"v_lshl_add_u32 v{VVD}, v{t3}, 4, v{t5}")
    A(f"v_and_b32 v{t3}, 15, v{t4}")
    A(f"v_xor_b32 v{t3}, v{t1}, v{t3}")
    A(f"v_lshl_add_u32 v{VKD}, v{t3}, 4, v{t5}")
    A(f"v_add_u32 v{t4}, 4, v{t4}")
    A(f"v_and_b32 v{t3}, 15, v{t4}")
    A(f"v_xor_b32 v{t3}, v{t1}, v{t3}")
    A(f"v_lshl_add_u32 v{VKD+1}, v{t3}, 4, v{t5}")
    A("s_waitcnt lgkmcnt(0)")
    A(f"s_mul_i32 s46, s{S_B}, 276480")
    A(f"s_add_u32 s{SRD_X}, s36, s46")
    A(f"s_addc_u32 s{SRD_X+1}, s37, 0")
    A(f"s_mov_b32 s{SRD_X+2}, 276480")
    A(f"s_mov_b32 s{SRD_X+3}, 0x20000")
    A(f"s_lshl_b32 s46, s{S_H}, 8")
    A(f"s_add_u32 s{SRD_W}, s42, s46")
    A(f"s_addc_u32 s{SRD_W+1}, s43, 0")
    A(f"s_sub_u32 s{SRD_W+2}, {576*8192}, s46")
    A(f"s_mov_b32 s{SRD_W+3}, 0x20000")
    A(f"s_lshl_b32 s46, s{S_B}, 5")
    A(f"s_add_u32 s46, s46, s{S_H}")
    A(f"s_lshl_b32 s46, s46, 19")
    A(f"s_add_u32 s{SRD_K}, s38, s46")
    A(f"s_addc_u32 s{SRD_K+1}, s39, 0")
    A(f"s_mov_b32 s{SRD_K+2}, 524288")
    A(f"s_mov_b32 s{SRD_K+3}, 0x20000")
    A(f"s_add_u32 s{SRD_V}, s40, s46")
    A(f"s_addc_u32 s{SRD_V+1}, s41, 0")
    A(f"s_mov_b32 s{SRD_V+2}, 524288")
    A(f"s_mov_b32 s{SRD_V+3}, 0x20000")
    A(f"s_mov_b32 s{SRD_O}, s44")
    A(f"s_mov_b32 s{SRD_O+1}, s45")
    A(f"s_mov_b32 s{SRD_O+2}, {120*131072}")
    A(f"s_mov_b32 s{SRD_O+3}, 0x20000")
    A(f"s_lshl_b32 s34, s{S_W}, 13")
    A(f"s_lshl_b32 s35, s{S_W}, 12")

    def dma_chunk(c):
        st = c & 1
        ops = []
        for p in range(8):
            ops.append(([f"s_add_u32 m0, s34, {XST[st] + p*1024}", f"s_mov_b32 s46, {c*128 + p*9216}"],
                        f"buffer_load_dwordx4 v{VXD + (p & 1)}, s[{SRD_X}:{SRD_X+3}], s46 offen lds", ("c", c)))
        for p in range(4):
            ops.append(([f"s_add_u32 m0, s35, {WST[st] + p*1024}", f"s_mov_b32 s46, {c*64*8192 + p*32768}"],
                        f"buffer_load_dwordx4 v{VWD}, s[{SRD_W}:{SRD_W+3}], s46 offen lds", ("c", c)))
        return ops
    def emit_dma(ops):
        for pre_, ld, tag in ops:
            for x in pre_: A(x)
            A(ld)
            vm.issue(tag)
    def dma_k(t, soff=None):
        so = soff or "s46"
        pre_ = [f"s_add_u32 m0, s{S_WB}, {KRING + (t % 8)*8192}"]
        if soff is None: pre_.append(f"s_mov_b32 s46, {t*8192}")
        else: pre_.append(f"s_add_u32 {soff}, {soff}, 8192")
        return [(pre_, f"buffer_load_dwordx4 v{VKD}, s[{SRD_K}:{SRD_K+3}], {so} offen {NT} lds", ("k", t)),
                ([], f"buffer_load_dwordx4 v{VKD+1}, s[{SRD_K}:{SRD_K+3}], {so} offen offset:1024 {NT} lds", ("k", t))]
    def dma_v(t, soff=None):
        so = soff or "s46"
        pre_ = [f"s_add_u32 m0, s{S_WB}, {VRING + (t % 8)*8192}"]
        if soff is None: pre_.append(f"s_mov_b32 s46, {t*8192}")
        else: pre_.append(f"s_add_u32 {soff}, {soff}, 8192")
        return [(pre_, f"buffer_load_dwordx4 v{VVD}, s[{SRD_V}:{SRD_V+3}], {so} offen {NT} lds", ("v", t)),
                ([], f"buffer_load_dwordx4 v{VVD}, s[{SRD_V}:{SRD_V+3}], {so} offen offset:1024 {NT} lds", ("v", t))]

    emit_dma(dma_chunk(0))
    emit_dma(dma_chunk(1))
    for t in range(4):
        emit_dma(dma_k(t)); emit_dma(dma_v(t))

    A(f"v_and_b32 v{t0}, 31, v{L}")
    A(f"v_lshrrev_b32 v{t1}, 5, v{L}")
    A(f"v_and_b32 v{t2}, 15, v{t0}")
    for s_ in range(8):
        A(f"v_add_u32 v{t3}, {2*s_}, v{t1}")
        A(f"v_xor_b32 v{t3}, v{t3}, v{t2}")
        A(f"v_lshlrev_b32 v{t3}, 4, v{t3}")
        A(f"v_lshl_add_u32 v{VKR+s_}, v{t0}, 8, v{t3}")
    A(f"v_bfe_u32 v{t2}, v{t0}, 1, 3")
    A(f"v_lshlrev_b32 v{t4}, 7, v{t0}")
    A(f"v_add_u32 v{t4}, s34, v{t4}")
    for ks in range(4):
        A(f"v_add_u32 v{t3}, {2*ks}, v{t1}")
        A(f"v_xor_b32 v{t3}, v{t3}, v{t2}")
        A(f"v_lshl_add_u32 v{VXR+ks}, v{t3}, 4, v{t4}")
    A(f"v_bfe_u32 v{t0}, v{L}, 2, 2")
    A(f"v_bfe_u32 v{t2}, v{L}, 4, 1")
    A(f"v_bfe_u32 v{t3}, v{L}, 1, 1")
    A(f"v_and_b32 v{t4}, 1, v{L}")
    for dt in range(4):
        A(f"v_xor_b32 v{t5}, {dt}, v{t0}")
        A(f"v_lshlrev_b32 v{t5}, 2, v{t5}")
        A(f"v_lshl_add_u32 v{t5}, v{t2}, 1, v{t5}")
        A(f"v_add_u32 v{VT+6}, v{t5}, v{t3}")
        A(f"v_lshlrev_b32 v{VT+6}, 4, v{VT+6}")
        A(f"v_lshl_add_u32 v{VT+6}, v{t4}, 3, v{VT+6}")
        A(f"v_lshl_add_u32 v{VT+7}, v{t1}, 2, v{t0}")
        A(f"v_lshl_add_u32 v{VT+6}, v{VT+7}, 8, v{VT+6}")
        A(f"v_add_u32 v{VVR+dt}, {VRING}, v{VT+6}")
        A(f"v_add_u32 v{VT+6}, v{t5}, v{t4}")
        A(f"v_lshlrev_b32 v{VT+6}, 4, v{VT+6}")
        A(f"v_lshl_add_u32 v{VT+6}, v{t3}, 3, v{VT+6}")
        A(f"v_lshl_add_u32 v{VT+7}, v{t1}, 3, v{t0}")
        A(f"v_lshl_add_u32 v{VT+6}, v{VT+7}, 8, v{VT+6}")
        A(f"v_add_u32 v{VWR+dt}, {WST[0]}, v{VT+6}")

    def rd_step(n):
        c, ks = n // 4, n % 4
        st, buf = c & 1, n & 1
        ops = []
        for dt in range(4):
            for t in range(2):
                r = WF + buf*16 + dt*4 + 2*t
                ops.append(f"ds_read_b64_tr_b16 a[{r}:{r+1}], v{VWR+dt} offset:{(WST[st]-WST[0]) + (16*ks + 4*t)*256}")
        for j in range(2):
            r = XF + buf*8 + j*4
            ops.append(f"ds_read_b128 a[{r}:{r+3}], v{VXR+ks} offset:{XST[st] + j*4096}")
        return [ops[8], ops[0], ops[1], ops[9]] + ops[2:8]
    assert XST[0] + 4096 < 65536
    def fix_off(op):
        return op
    VXR2 = VT + 20
    for ks in range(4):
        A(f"v_add_u32 v{VXR2+ks}, {XST[1]}, v{VXR+ks}")
        A(f"v_add_u32 v{VXR+ks}, {XST[0]}, v{VXR+ks}")
    def rd_step(n):
        c, ks = n // 4, n % 4
        st, buf = c & 1, n & 1
        w_ = []
        for dt in range(4):
            for t in range(2):
                r = WF + buf*16 + dt*4 + 2*t
                w_.append(f"ds_read_b64_tr_b16 a[{r}:{r+1}], v{VWR+dt} offset:{(WST[st]-WST[0]) + (16*ks + 4*t)*256}")
        x_ = []
        for j in range(2):
            r = XF + buf*8 + j*4
            base = (VXR if st == 0 else VXR2) + ks
            x_.append(f"ds_read_b128 a[{r}:{r+3}], v{base} offset:{j*4096}")
        return [x_[0], w_[0], w_[1], x_[1]] + w_[2:]
    A(f"s_waitcnt vmcnt({vm.need({('c',0)})})")
    A("s_barrier")
    if stamps: A("s_memrealtime s[62:63]")
    for x in rd_step(0): A(x)
    pend = []
    for n in range(36):
        c, ks = n // 4, n % 4
        buf = n & 1
        mf = []
        for dt in range(4):
            for j in range(2):
                d = (dt*2 + j)*16
                cc = "0" if n == 0 else f"v[{d}:{d+15}]"
                mf.append(mfma32(f"v[{d}:{d+15}]", f"a[{WF+buf*16+dt*4}:{WF+buf*16+dt*4+3}]", f"a[{XF+buf*8+j*4}:{XF+buf*8+j*4+3}]", cc))
        pre = [[] for _ in mf]; valu = [[] for _ in mf]
        waits = {0: ["s_waitcnt lgkmcnt(0)"]}
        if n + 1 < 36:
            if (n + 1) % 4 == 0:
                waits[0] += [f"s_waitcnt vmcnt({vm.need({('c', c+1)})})", "s_barrier"]
                if c + 2 <= 8: pend = dma_chunk(c + 2)
            rd = rd_step(n + 1)
            for g in range(5):
                pre[g] += rd[2*g:2*g+2]
        take, pend = pend[:6], pend[6:]
        for i_, (p_, ld, tag) in enumerate(take):
            g = 2 + i_
            pre[g] += p_ + [ld]
            vm.issue(tag)
        emit_gaps(A, mf, pre, valu, waits)
    assert not pend
    A("s_barrier")
    if stamps: A("s_memrealtime s[64:65]")
    for t in range(4, 8): emit_dma(dma_k(t))
    for t in range(4, LV): emit_dma(dma_v(t))
    def k_reads(t):
        return [f"ds_read_b128 a[{KF+4*s_}:{KF+4*s_+3}], v{VKR+s_} offset:{KRING + (t % 8)*8192}" for s_ in range(8)]
    def v_reads(t):
        ops = []
        for u in range(2):
            for dt in range(4):
                for tt in range(2):
                    r = VF + (u*4+dt)*4 + 2*tt
                    ops.append(f"ds_read_b64_tr_b16 a[{r}:{r+1}], v{VVR+dt} offset:{(t % 8)*8192 + (16*u+8*tt)*256}")
        return ops
    for x in k_reads(0): A(x)
    A(f"s_mov_b32 s46, {hex(f2u(SCALE))}")
    A("s_mov_b32 s47, s46")
    A("s_nop 7")
    for dt in range(4):
        for j in range(2):
            d = (dt*2 + j)*16
            if dt == 3: A("s_nop 7") if j == 0 else None
            for i_ in range(0, 16, 2):
                A(f"v_pk_mul_f32 v[{d+i_}:{d+i_+1}], v[{d+i_}:{d+i_+1}], s[46:47]")
            for e_ in range(2):
                for tp in range(4):
                    A(f"v_cvt_pk_bf16_f32 v{QF + (j*8 + 2*dt + e_)*4 + tp}, v{d+8*e_+2*tp}, v{d+8*e_+2*tp+1}")
    def qk_mfmas(e, first_c):
        mf = []
        for s_ in range(8):
            for j in range(2):
                d = SBUF[e] + 16*j
                cc = first_c(j) if s_ == 0 else f"v[{d}:{d+15}]"
                mf.append(mfma32(f"v[{d}:{d+15}]", f"a[{KF+4*s_}:{KF+4*s_+3}]", f"v[{QF+(j*8+s_)*4}:{QF+(j*8+s_)*4+3}]", cc))
        return mf
    def pv_mfmas(e):
        mf = []
        for u in range(2):
            for dt in range(4):
                for j in range(2):
                    o = OACC + (dt*2+j)*16
                    pr = PBUF[e] + (j*2+u)*4
                    mf.append((o, f"a[{VF+(u*4+dt)*4}:{VF+(u*4+dt)*4+3}]", f"v[{pr}:{pr+3}]"))
        return mf
    A("s_waitcnt lgkmcnt(0)")
    mf = qk_mfmas(0, lambda j: "0")
    k1r = k_reads(1)
    for g, m in enumerate(mf):
        A(m)
        if g % 2 == 1: A(k1r[g//2])
        for i_ in range(8): A(f"v_accvgpr_write_b32 a{OACC + g*8 + i_}, 0")
    A(f"v_mov_b32 v{VL}, 0")
    A(f"v_mov_b32 v{VL+1}, 0")
    A("s_nop 7")
    A("s_nop 3")
    for j in range(2):
        S = SBUF[0] + 16*j
        m = VT + j
        A(f"v_max3_f32 v{m}, v{S}, v{S+1}, v{S+2}")
        for i_ in range(3, 15, 2):
            A(f"v_max3_f32 v{m}, v{m}, v{S+i_}, v{S+i_+1}")
        A(f"v_max_f32 v{m}, v{m}, v{S+15}")
    for j in range(2):
        A(f"v_mov_b32 v{VT+2+j}, v{VT+j}")
    A("s_nop 1")
    for j in range(2):
        A(f"v_permlane32_swap_b32 v{VT+j}, v{VT+2+j}")
    A("s_nop 1")
    A(f"v_and_b32 v{VT+4}, 31, v{VLANE}")
    A(f"s_lshl_b32 s46, s{S_W}, 6")
    A(f"v_add_u32 v{VT+4}, s46, v{VT+4}")
    for j in range(2):
        A(f"v_max_f32 v{VT+j}, v{VT+j}, v{VT+2+j}")
        A(f"v_sub_f32 v{VT+j}, 0, v{VT+j}")
    A(f"v_add_u32 v{VT+5}, 32, v{VT+4}")
    A(f"v_cmp_gt_u32 vcc, 240, v{VT+5}")
    A(f"v_mov_b32 v{VT+6}, 0xff7fffff")
    A("s_nop 0")
    A(f"v_cndmask_b32 v{VT+1}, v{VT+6}, v{VT+1}, vcc")
    for j in range(2):
        for i_ in range(16):
            A(f"v_mov_b32 v{NEGM+16*j+i_}, v{VT+j}")
            A(f"v_add_f32 v{SBUF[0]+16*j+i_}, v{SBUF[0]+16*j+i_}, v{VT+j}")
    A(f"s_mov_b32 s{S_KOFF}, {7*8192}")
    A(f"s_mov_b32 s{S_VOFF}, {(LV-1)*8192}")
    A("s_waitcnt lgkmcnt(0)")
    A("s_barrier")
    if stamps: A("s_memrealtime s[66:67]")
    for t in range(8, LK):
        emit_dma(dma_k(t, f"s{S_KOFF}"))

    negm = lambda j: f"v[{NEGM+16*j}:{NEGM+16*j+15}]"
    def iteration(i, do_qk=True, do_pv=True, first_pv=False, track=True):
        e = i & 1
        mf, waits = [], {}
        if do_qk: mf += qk_mfmas(e ^ 1, negm)
        nq = len(mf)
        if do_pv:
            for o, a_, b_ in pv_mfmas(e ^ 1):
                mf.append(mfma32(f"a[{o}:{o+15}]", a_, b_, f"a[{o}:{o+15}]"))
        G = len(mf)
        valu, tail = softmax_valu(e, G)
        pre = [[] for _ in range(G)]
        dv, dk = dma_v(i + LV, f"s{S_VOFF}"), dma_k(i + LK, f"s{S_KOFF}")
        if do_qk and do_pv:
            for g, x in enumerate(v_reads(i - 1)): pre[g].append(x)
            for g, x in enumerate(k_reads(i + 2)): pre[16 + g].append(x)
            waits[16] = ["s_waitcnt lgkmcnt(8)"]
            waits[24] = ["s_waitcnt lgkmcnt(8)"]
            dpos = [3, 9, 25, 28]
        elif do_qk:
            for g, x in enumerate(k_reads(i + 2)): pre[8 + g].append(x)
            pre[8:16] = [[] for _ in range(8)]
            kr = k_reads(i + 2)
            for s_ in range(8):
                g = min(15, 2*s_ + 1)
                pre[g].append(kr[s_])
            dpos = [2, 4, 8, 12]
        else:
            dpos = None
        if dpos:
            for (p_, ld, tag), g in zip(dv + dk, dpos):
                pre[g-1] += p_
                pre[g].append(ld)
                vm.issue(tag)
        emit_gaps(A, mf, pre, valu, waits)
        for x in tail: A(x)

    iteration(0, do_pv=False)
    need = {}
    def end_iter(i, emit_n=None):
        tags = {("v", i)}
        if i + 3 <= 63: tags.add(("k", i + 3))
        return vm.need(tags)
    n0 = end_iter(0)
    A(f"s_waitcnt vmcnt({n0}) lgkmcnt(0)")
    A("s_barrier")
    A(f"s_mov_b32 s{S_GRP}, 0")
    A("s_branch L1_pos1")
    Areal = A
    sim = Asm()
    class Swap:
        pass
    import copy
    vm_save = copy.deepcopy(vm.q)
    ns = {}
    A_lines = A.lines
    A.lines = []
    for i in range(1, 63):
        iteration(i)
        ns[i] = end_iter(i)
    A.lines = A_lines
    vm_after = list(vm.q)
    npos = {p: min(ns[i] for i in range(1, 63) if i % 8 == p) for p in range(8)}
    vm.q = list(vm_save)
    for p in range(8):
        A.label(f"L1_pos{p}")
        iteration(8 + p)
        A(f"s_waitcnt vmcnt({npos[p]}) lgkmcnt(0)")
        if p == 6:
            A(f"s_cmp_eq_u32 s{S_GRP}, 7")
            A("s_barrier")
            A("s_cbranch_scc1 L1_tail")
        elif p == 7:
            A(f"s_add_u32 s{S_GRP}, s{S_GRP}, 1")
            A("s_barrier")
            A("s_branch L1_pos0")
        else:
            A("s_barrier")
    A.label("L1_tail")
    if stamps: A("s_memrealtime s[68:69]")
    e = 63 & 1
    for x in v_reads(62): A(x)
    mf = [mfma32(f"a[{o}:{o+15}]", a_, b_, f"a[{o}:{o+15}]") for o, a_, b_ in pv_mfmas(e ^ 1)]
    valu, tail = softmax_valu(e, 16)
    A("s_waitcnt lgkmcnt(0)")
    A("s_waitcnt vmcnt(0)")
    A("s_barrier")
    vr = v_reads(63)
    pre = [[] for _ in range(16)]
    for f_ in range(8):
        g = min(15, 2*f_ + 1)
        pre[g] += vr[2*f_:2*f_+2]
    emit_gaps(A, mf, pre, valu, None)
    for x in tail: A(x)
    A("s_waitcnt lgkmcnt(0)")
    A("s_barrier")
    A("s_nop 0")
    for o, a_, b_ in pv_mfmas(e):
        A(mfma32(f"a[{o}:{o+15}]", a_, b_, f"a[{o}:{o+15}]"))
    for j in range(2):
        A(f"v_mov_b32 v{VT+2+j}, v{VL+j}")
    A("s_nop 1")
    for j in range(2):
        A(f"v_permlane32_swap_b32 v{VL+j}, v{VT+2+j}")
    A("s_nop 1")
    for j in range(2):
        A(f"v_add_f32 v{VL+j}, v{VL+j}, v{VT+2+j}")
    A(f"v_and_b32 v{VT+4}, 31, v{VLANE}")
    A(f"s_lshl_b32 s46, s{S_W}, 6")
    A(f"v_add_u32 v{VT+4}, s46, v{VT+4}")
    A(f"v_add_u32 v{VT+5}, 32, v{VT+4}")
    A(f"s_mov_b32 s47, {hex(f2u(2.0**40))}")
    A(f"v_cmp_ngt_f32 s[48:49], s47, v{VL}")
    A(f"v_cmp_ngt_f32 s[50:51], s47, v{VL+1}")
    A(f"v_cmp_gt_u32 vcc, 240, v{VT+5}")
    A("s_nop 3")
    A("s_and_b64 s[50:51], s[50:51], vcc")
    A("s_or_b64 s[48:49], s[48:49], s[50:51]")
    A("s_cmp_eq_u64 s[48:49], 0")
    A("s_cbranch_scc0 L1_slow")
    A.label("L1_norm")
    A(f"s_mul_i32 s46, s{S_B}, 240")
    A(f"v_lshrrev_b32 v{VT+6}, 5, v{VLANE}")
    for j in range(2):
        q = VT + 4 + j
        A(f"v_add_u32 v{VT+7}, s46, v{q}")
        A(f"v_lshrrev_b32 v{VT+8}, 4, v{VT+7}")
        A(f"v_lshlrev_b32 v{VT+8}, 17, v{VT+8}")
        A(f"v_and_b32 v{VT+7}, 15, v{VT+7}")
        A(f"v_lshl_add_u32 v{VT+8}, v{VT+7}, 4, v{VT+8}")
        A(f"v_lshl_add_u32 v{VT+8}, v{VT+6}, 8, v{VT+8}")
        A(f"v_cmp_gt_u32 vcc, 240, v{q}")
        A(f"v_mov_b32 v{VT+9}, 0x7ff00000")
        A("s_nop 0")
        A(f"v_cndmask_b32 v{VT+10+j}, v{VT+9}, v{VT+8}, vcc")
        A(f"v_rcp_f32 v{VT+12+j}, v{VL+j}")
    A(f"s_lshl_b32 s46, s{S_H}, 12")
    A("s_nop 7")
    tmp = 0
    for dt in range(4):
        A(f"s_add_u32 s47, s46, {dt*1024}")
        for j in range(2):
            o = OACC + (dt*2+j)*16
            base = ((dt*2+j) % 4) * 24
            for i_ in range(16):
                A(f"v_accvgpr_read_b32 v{base+i_}, a{o+i_}")
            for i_ in range(16):
                A(f"v_mul_f32 v{base+i_}, v{base+i_}, v{VT+12+j}")
            for i_ in range(8):
                A(f"v_cvt_pk_bf16_f32 v{base+16+i_}, v{base+2*i_}, v{base+2*i_+1}")
            for e_ in range(2):
                A(f"buffer_store_dwordx4 v[{base+16+4*e_}:{base+16+4*e_+3}], v{VT+10+j}, s[{SRD_O}:{SRD_O+3}], s47 offen offset:{e_*512}")
    if stamps:
        A("s_memrealtime s[70:71]")
        A("s_waitcnt lgkmcnt(0) vmcnt(0)")
        A("s_memrealtime s[72:73]")
        A("s_waitcnt lgkmcnt(0)")
        A(f"s_cmp_lg_u32 s{S_W}, 0")
        A("s_cbranch_scc1 L1_done")
        A(f"s_mov_b32 s{SRD_O+2}, 0x20000000")
        for i_, r in enumerate([60, 62, 64, 66, 68, 70, 72]):
            A(f"v_mov_b32 v{i_}, s{r}")
        A("v_mov_b32 v7, s61")
        A("s_lshl_b32 s46, s2, 5")
        A("s_add_u32 s46, s46, 0x1000000")
        A("v_mov_b32 v8, s46")
        A(f"v_cmp_eq_u32 vcc, 0, v{VLANE}")
        A("s_and_saveexec_b64 s[48:49], vcc")
        A("s_cbranch_execz L1_done")
        A(f"buffer_store_dwordx4 v[0:3], v8, s[{SRD_O}:{SRD_O+3}], 0 offen")
        A(f"buffer_store_dwordx4 v[4:7], v8, s[{SRD_O}:{SRD_O+3}], 0 offen offset:16")
    A.label("L1_done")
    A("s_endpgm")

    A.label("L1_slow")
    A(f"s_lshl_b32 s52, s{S_W}, 13")
    for s_ in range(8): A(f"v_add_u32 v{VKR+s_}, s52, v{VKR+s_}")
    for dt in range(4): A(f"v_add_u32 v{VVR+dt}, s52, v{VVR+dt}")
    T = VT + 16
    A(f"v_lshrrev_b32 v{T}, 4, v{VLANE}")
    A(f"v_and_b32 v{T+1}, 15, v{VLANE}")
    for p in range(4):
        A(f"v_add_u32 v{T+2}, {4*p}, v{T}")
        A(f"v_xor_b32 v{T+3}, v{T+1}, v{T+2}")
        A(f"v_lshlrev_b32 v{T+3}, 4, v{T+3}")
        A(f"v_lshl_add_u32 v{T+4+p}, v{T+2}, 8, v{T+3}")
    A(f"v_lshlrev_b32 v{T+2}, 2, v{T}")
    A(f"v_xor_b32 v{T+3}, v{T+1}, v{T+2}")
    A(f"v_lshlrev_b32 v{T+3}, 4, v{T+3}")
    A(f"v_lshl_add_u32 v{T+8}, v{T}, 8, v{T+3}")
    def slow_k():
        for p in range(8):
            A(f"s_add_u32 m0, s52, {KRING + p*1024}")
            A(f"s_add_u32 s54, s53, {(p//4)*4096}")
            A(f"buffer_load_dwordx4 v{T+4+(p%4)}, s[{SRD_K}:{SRD_K+3}], s54 offen lds")
    def slow_v():
        for p in range(8):
            A(f"s_add_u32 m0, s52, {VRING + p*1024}")
            A(f"s_add_u32 s54, s53, {p*1024}")
            A(f"buffer_load_dwordx4 v{T+8}, s[{SRD_V}:{SRD_V+3}], s54 offen lds")
    A(f"v_mov_b32 v{VT}, 0xff800000")
    A(f"v_mov_b32 v{VT+1}, 0xff800000")
    A("s_mov_b32 s53, 0")
    A.label("L1_slow_max")
    slow_k()
    A("s_waitcnt vmcnt(0)")
    for x in k_reads(0): A(x)
    A("s_waitcnt lgkmcnt(0)")
    for m in qk_mfmas(0, lambda j: "0"): A(m)
    A("s_nop 7"); A("s_nop 7")
    for j in range(2):
        S = SBUF[0] + 16*j
        for i_ in range(0, 16, 2):
            A(f"v_max3_f32 v{VT+j}, v{VT+j}, v{S+i_}, v{S+i_+1}")
    A("s_add_u32 s53, s53, 8192")
    A("s_cmp_lt_u32 s53, 524288")
    A("s_cbranch_scc1 L1_slow_max")
    for j in range(2):
        A(f"v_mov_b32 v{VT+2+j}, v{VT+j}")
    A("s_nop 1")
    for j in range(2):
        A(f"v_permlane32_swap_b32 v{VT+j}, v{VT+2+j}")
    A("s_nop 1")
    for j in range(2):
        A(f"v_max_f32 v{VT+j}, v{VT+j}, v{VT+2+j}")
        A(f"v_sub_f32 v{VT+j}, 0, v{VT+j}")
    for j in range(2):
        for i_ in range(16):
            A(f"v_mov_b32 v{NEGM+16*j+i_}, v{VT+j}")
    for i_ in range(128): A(f"v_accvgpr_write_b32 a{OACC+i_}, 0")
    A(f"v_mov_b32 v{VL}, 0")
    A(f"v_mov_b32 v{VL+1}, 0")
    A("s_mov_b32 s53, 0")
    A.label("L1_slow_main")
    slow_k(); slow_v()
    A("s_waitcnt vmcnt(0)")
    for x in k_reads(0): A(x)
    for x in v_reads(0): A(x)
    A("s_waitcnt lgkmcnt(0)")
    for m in qk_mfmas(0, negm): A(m)
    A("s_nop 7"); A("s_nop 7")
    for i_ in range(32): A(f"v_exp_f32 v{i_}, v{i_}")
    A("s_nop 0")
    for i_ in range(32): A(f"v_add_f32 v{VL + i_//16}, v{VL + i_//16}, v{i_}")
    for i_ in range(0, 32, 2): A(f"v_cvt_pk_bf16_f32 v{PBUF[0] + i_//2}, v{i_}, v{i_+1}")
    A("s_nop 1")
    for o, a_, b_ in pv_mfmas(0):
        A(mfma32(f"a[{o}:{o+15}]", a_, b_, f"a[{o}:{o+15}]"))
    A("s_add_u32 s53, s53, 8192")
    A("s_cmp_lt_u32 s53, 524288")
    A("s_cbranch_scc1 L1_slow_main")
    for j in range(2):
        A(f"v_mov_b32 v{VT+2+j}, v{VL+j}")
    A("s_nop 1")
    for j in range(2):
        A(f"v_permlane32_swap_b32 v{VL+j}, v{VT+2+j}")
    A("s_nop 1")
    for j in range(2):
        A(f"v_add_f32 v{VL+j}, v{VL+j}, v{VT+2+j}")
    A(f"v_and_b32 v{VT+4}, 31, v{VLANE}")
    A(f"s_lshl_b32 s46, s{S_W}, 6")
    A(f"v_add_u32 v{VT+4}, s46, v{VT+4}")
    A(f"v_add_u32 v{VT+5}, 32, v{VT+4}")
    A("s_nop 7")
    A("s_branch L1_norm")

def build(opt, k2=None):
    A = Asm()
    A.raw(HEADER.rstrip())
    A.raw(f"; @launch kernel={K1} grid=(256,1,1) block=(256,1,1) lds={LDS_K1}")
    if k2:
        A.raw(f"; @launch kernel={K2} grid=(216,1,1) block=(256,1,1) lds={k2.LDS}")
    A.raw('.amdgcn_target "amdgcn-amd-amdhsa--gfx950"')
    gen_k1(A, opt)
    if k2: k2.gen(A, opt)
    kernel_desc(A, K1, 512, 256)
    if k2: kernel_desc(A, K2, k2.VGPR, k2.ACCUM)
    return A.text()

if __name__ == "__main__":
    import gen_k2
    open("k1.s", "w").write(build(dict(stamps=True)))
    open("k12s.s", "w").write(build(dict(stamps=True), gen_k2))
    open("k12.s", "w").write(build(dict(), gen_k2))
```

```python
from asmlib import *
K2 = 'oproj_kernel'
LDS = 4*21760
VGPR = 272
ACCUM = 160
NWG = 216
VLANE, VTID = 0, 1
VBO = 2
VWD = 3
VAR = 4
VT = 8
BF = 32
AF = 0
ACC = 32
SRD_O, SRD_WO, SRD_OUT = 8, 12, 16
DEPTH = 3

def gen(A, opt):
    NT = opt.get("k2nt", "")
    stamps = opt.get("stamps", False)
    kernel_begin(A, K2)
    A(f"s_cmp_ge_u32 s2, {NWG}")
    A("s_cbranch_scc1 L2_done")
    A("s_load_dwordx4 s[36:39], s[0:1], 32")
    A("s_load_dwordx2 s[40:41], s[0:1], 56")
    if stamps: A("s_memrealtime s[60:61]")
    A(f"v_and_b32 v{VLANE}, 63, v0") if False else None
    A(f"v_mov_b32 v{VTID}, v0")
    A(f"v_lshrrev_b32 v{VT}, 6, v0")
    A(f"v_and_b32 v{VLANE}, 63, v0")
    A("s_and_b32 s46, s2, 7")
    A("s_lshr_b32 s47, s2, 3")
    A(f"v_readfirstlane_b32 s3, v{VT}")
    A("s_mul_i32 s48, s47, 57")
    A("s_lshr_b32 s48, s48, 9")
    A("s_mul_i32 s49, s48, 9")
    A("s_sub_u32 s33, s47, s49")
    A("s_mul_i32 s46, s46, 3")
    A("s_add_u32 s32, s46, s48")
    L = VLANE
    t0, t1, t2, t3, t4 = VT, VT+1, VT+2, VT+3, VT+4
    A(f"v_lshlrev_b32 v{VBO}, 4, v{L}")
    A(f"v_lshrrev_b32 v{t0}, 3, v{L}")
    A(f"v_mul_u32_u24 v{t0}, 1152, v{t0}")
    A(f"v_lshrrev_b32 v{t1}, 4, v{L}")
    A(f"v_lshlrev_b32 v{t2}, 1, v{t1}")
    A(f"v_and_b32 v{t3}, 7, v{L}")
    A(f"v_xor_b32 v{t3}, v{t3}, v{t2}")
    A(f"v_lshl_add_u32 v{VWD}, v{t3}, 4, v{t0}")
    A(f"v_bfe_u32 v{t0}, v{L}, 2, 2")
    A(f"v_and_b32 v{t2}, 1, v{t1}")
    A(f"v_lshrrev_b32 v{t3}, 1, v{t1}")
    if opt.get("newmap"):
        A(f"v_lshl_add_u32 v{t4}, v{t1}, 2, v{t0}")
    else:
        A(f"v_lshlrev_b32 v{t4}, 4, v{t3}")
        A(f"v_lshl_add_u32 v{t4}, v{t2}, 2, v{t4}")
        A(f"v_add_u32 v{t4}, v{t4}, v{t0}")
    A(f"v_lshrrev_b32 v{t3}, 1, v{t0}")
    A(f"v_lshl_add_u32 v{t3}, v{t2}, 1, v{t3}")
    A(f"v_lshlrev_b32 v{t3}, 1, v{t3}")
    A(f"v_bfe_u32 v{t2}, v{L}, 1, 1")
    A(f"v_and_b32 v{t1}, 1, v{L}")
    A(f"s_lshl_b32 s34, s3, 14")
    for nt in range(4):
        A(f"v_add_u32 v{VT+5}, {2*nt}, v{t2}")
        A(f"v_xor_b32 v{VT+5}, v{VT+5}, v{t3}")
        A(f"v_lshlrev_b32 v{VT+5}, 4, v{VT+5}")
        A(f"v_lshl_add_u32 v{VT+5}, v{t1}, 3, v{VT+5}")
        A(f"v_lshl_add_u32 v{VT+5}, v{t4}, 7, v{VT+5}")
        A(f"v_add_u32 v{VAR+nt}, s34, v{VT+5}")
    A("s_waitcnt lgkmcnt(0)")
    A("s_mul_i32 s46, s32, 655360")
    A("s_lshl_b32 s47, s3, 15")
    A("s_add_u32 s46, s46, s47")
    A(f"s_add_u32 s{SRD_O}, s40, s46")
    A(f"s_addc_u32 s{SRD_O+1}, s41, 0")
    A(f"s_sub_u32 s{SRD_O+2}, {120*131072}, s46")
    A(f"s_mov_b32 s{SRD_O+3}, 0x20000")
    A("s_mul_i32 s46, s3, 1179648")
    A("s_lshl_b32 s47, s33, 7")
    A("s_add_u32 s46, s46, s47")
    A(f"s_add_u32 s{SRD_WO}, s36, s46")
    A(f"s_addc_u32 s{SRD_WO+1}, s37, 0")
    A(f"s_sub_u32 s{SRD_WO+2}, {4096*1152}, s46")
    A(f"s_mov_b32 s{SRD_WO+3}, 0x20000")
    A(f"s_mov_b32 s{SRD_OUT}, s38")
    A(f"s_mov_b32 s{SRD_OUT+1}, s39")
    A(f"s_mov_b32 s{SRD_OUT+2}, {1920*1152}")
    A(f"s_mov_b32 s{SRD_OUT+3}, 0x20000")
    A("s_mov_b32 s28, 0")
    A("s_mov_b32 s29, 0")
    def loads(slot):
        ops = []
        for p in range(4):
            ops.append(([f"s_add_u32 m0, s34, {slot*4096 + p*1024}", f"s_add_u32 s46, s29, {p*9216}"],
                        f"buffer_load_dwordx4 v{VWD}, s[{SRD_WO}:{SRD_WO+3}], s46 offen {NT} lds"))
        for mt in range(5):
            r = BF + slot*20 + mt*4
            ops.append(([f"s_add_u32 s47, s28, {mt*131072}"],
                        f"buffer_load_dwordx4 v[{r}:{r+3}], v{VBO}, s[{SRD_O}:{SRD_O+3}], s47 offen {NT}"))
        ops.append((["s_add_u32 s28, s28, 1024", "s_add_u32 s29, s29, 36864"], None))
        return ops
    if opt.get("k2_skip_o"): _old = loads
    def filt(ops):
        out = []
        for p_, ld in ops:
            if ld and opt.get("k2_skip_o") and "v[" in ld and "lds" not in ld: ld = "s_nop 0"
            if ld and opt.get("k2_skip_w") and "lds" in ld: ld = "s_nop 0"
            out.append((p_, ld))
        return out
    _loads = loads
    loads = lambda slot: filt(_loads(slot))
    def emit(ops):
        for p_, ld in ops:
            for x in p_: A(x)
            if ld: A(ld)
    def areads(slot, buf):
        ops = []
        for nt in range(4):
            for t in range(2):
                r = AF + buf*16 + nt*4 + 2*t
                ops.append(f"ds_read_b64_tr_b16 a[{r}:{r+1}], v{VAR+nt} offset:{slot*4096 + t*(2048 if opt.get('newmap') else 1024)}")
        return ops
    for s_ in range(DEPTH): emit(loads(s_))
    for i in range(80): A(f"v_accvgpr_write_b32 a{ACC+i}, 0")
    A(f"s_waitcnt vmcnt({9*(DEPTH-1)})")
    if stamps: A("s_memrealtime s[62:63]")
    for x in areads(0, 0): A(x)
    A("s_mov_b32 s30, 0")
    A.label("L2_loop")
    for u in range(4):
        buf = u & 1
        mf = []
        for nt in range(4):
            for mt in range(5):
                acc = ACC + (mt*4 + nt)*4
                b = BF + u*20 + mt*4
                mf.append(f"v_mfma_f32_16x16x32_bf16 a[{acc}:{acc+3}], a[{AF+buf*16+nt*4}:{AF+buf*16+nt*4+3}], v[{b}:{b+3}], a[{acc}:{acc+3}]")
        A(f"s_waitcnt vmcnt({9*(DEPTH-2)}) lgkmcnt(0)")
        rd = areads((u+1) % 4, buf ^ 1)
        ld = loads((u + DEPTH) % 4)
        pre = [[] for _ in range(20)]
        if not opt.get("k2_skip_ds"):
            for i_, x in enumerate(rd): pre[i_].append(x)
        g = 8
        for p_, l_ in ld:
            pre[g] += p_
            if l_: pre[g+1 if g+1 < 20 else g].append(l_)
            g = min(g + 1, 18)
        for m, p_ in zip(mf, pre):
            A(m)
            for x in p_: A(x)
    A("s_add_u32 s30, s30, 1")
    A("s_cmp_lt_u32 s30, 8")
    A("s_cbranch_scc1 L2_loop")
    if stamps: A("s_memrealtime s[64:65]")
    A("s_waitcnt vmcnt(0) lgkmcnt(0)")
    A("s_barrier")
    A(f"v_and_b32 v{t0}, 15, v{L}")
    A(f"v_lshrrev_b32 v{t1}, 4, v{L}")
    A(f"v_mul_u32_u24 v{t0}, 272, v{t0}")
    A(f"v_lshl_add_u32 v{t0}, v{t1}, 4, v{t0}")
    A(f"s_mul_i32 s46, s3, 21760")
    A(f"v_add_u32 v{t0}, s46, v{t0}")
    A("s_nop 7")
    for mt in range(5):
        for nt in range(4):
            acc = ACC + (mt*4 + nt)*4
            A(f"ds_write_b128 v{t0}, a[{acc}:{acc+3}] offset:{mt*16*272 + nt*64}")
    A("s_waitcnt lgkmcnt(0)")
    A("s_barrier")
    for i in range(3):
        A(f"v_add_u32 v{t0}, {256*i}, v{VTID}")
        A(f"v_lshrrev_b32 v{t1}, 3, v{t0}")
        A(f"v_and_b32 v{t2}, 7, v{t0}")
        A(f"v_mul_u32_u24 v{t3}, 272, v{t1}")
        A(f"v_lshl_add_u32 v{t3}, v{t2}, 5, v{t3}")
        if i == 2:
            A(f"v_min_u32 v{t3}, {79*272+7*32}, v{t3}")
        R = 32 + i*40
        for w in range(4):
            A(f"ds_read_b128 v[{R+w*8}:{R+w*8+3}], v{t3} offset:{w*21760}")
            A(f"ds_read_b128 v[{R+w*8+4}:{R+w*8+7}], v{t3} offset:{w*21760+16}")
        A("s_mul_i32 s46, s32, 80")
        A(f"v_add_u32 v{t4}, s46, v{t1}")
        A(f"v_mul_u32_u24 v{t4}, 1152, v{t4}")
        A(f"v_lshl_add_u32 v{t4}, v{t2}, 4, v{t4}")
        A("s_lshl_b32 s47, s33, 7")
        A(f"v_add_u32 v{VT+8+i}, s47, v{t4}")
        if i == 2:
            A(f"v_cmp_gt_u32 vcc, 80, v{t1}")
            A(f"v_mov_b32 v{t4}, 0x7ff00000")
            A("s_nop 0")
            A(f"v_cndmask_b32 v{VT+8+i}, v{t4}, v{VT+8+i}, vcc")
    for i in range(3):
        R = 32 + i*40
        A(f"s_waitcnt lgkmcnt({8*(2-i) if 8*(2-i) <= 15 else 15})") if False else None
    A("s_waitcnt lgkmcnt(0)")
    for i in range(3):
        R = 32 + i*40
        for k in range(8):
            A(f"v_add_f32 v{R+k}, v{R+k}, v{R+8+k}")
            A(f"v_add_f32 v{R+16+k}, v{R+16+k}, v{R+24+k}")
        for k in range(8):
            A(f"v_add_f32 v{R+k}, v{R+k}, v{R+16+k}")
        for k in range(4):
            A(f"v_cvt_pk_bf16_f32 v{R+32+k}, v{R+2*k}, v{R+2*k+1}")
        A(f"buffer_store_dwordx4 v[{R+32}:{R+35}], v{VT+8+i}, s[{SRD_OUT}:{SRD_OUT+3}], 0 offen")
    if stamps:
        A("s_waitcnt vmcnt(0)")
        A("s_memrealtime s[66:67]")
        A("s_waitcnt lgkmcnt(0)")
        A("s_cmp_lg_u32 s3, 0")
        A("s_cbranch_scc1 L2_done")
        A("s_mov_b32 s20, s40")
        A("s_mov_b32 s21, s41")
        A("s_mov_b32 s22, 0x20000000")
        A("s_mov_b32 s23, 0x20000")
        for i_, r in enumerate([60, 62, 64, 66]):
            A(f"v_mov_b32 v{4+i_}, s{r}")
        A("s_lshl_b32 s46, s2, 4")
        A("s_add_u32 s46, s46, 0x1010000")
        A("v_mov_b32 v8, s46")
        A(f"v_cmp_eq_u32 vcc, 0, v{VLANE}")
        A("s_and_saveexec_b64 s[48:49], vcc")
        A("s_cbranch_execz L2_done")
        A("buffer_store_dwordx4 v[4:7], v8, s[20:23], 0 offen")
    A.label("L2_done")
    A("s_endpgm")
```

```python
from asmlib import *
import re
K2 = 'oproj_kernel'
LDS = 49152
VGPR = 256
ACCUM = 128
NWG = 240
FLAGS_OFF = 0x1080000
PART_OFF = 0x1200000
VLANE = 0
VBO = 1
VWD = 2
VAR = 5
VT = 8
BF = lambda slot, s, mt: 32 + slot*24 + (s*3 + mt)*4
AF = lambda buf, nt: buf*24 + nt*4
ACC = lambda mt, nt: 48 + (mt*6 + nt)*4
SRD_O, SRD_WO, SRD_OUT, SRD_P = 8, 12, 16, 20
S_KQ, S_NT, S_ROW0, S_GRP, S_C = 32, 33, 34, 35, 30
def vr(n, c=4): return f"v[{n}:{n+c-1}]"
def ar(n, c=4): return f"a[{n}:{n+c-1}]"

def gen(A, opt):
    NT = opt.get("k2nt", "")
    stamps = opt.get("stamps", False) and not opt.get("k2nostamps")
    kernel_begin(A, K2)
    A(f"s_cmp_ge_u32 s2, {NWG}")
    A("s_cbranch_scc1 L2_done")
    A("s_load_dwordx4 s[36:39], s[0:1], 32")
    A("s_load_dwordx2 s[40:41], s[0:1], 56")
    if stamps: A("s_memrealtime s[60:61]")
    t0, t1, t2, t3, t4, t5 = [VT + i for i in range(6)]
    L = VLANE
    A(f"v_lshrrev_b32 v{t0}, 6, v0")
    A(f"v_and_b32 v{L}, 63, v0")
    A("s_and_b32 s46, s2, 7")
    A("s_lshr_b32 s47, s2, 3")
    A(f"v_readfirstlane_b32 s3, v{t0}")
    A("s_mul_i32 s48, s47, 43")
    A("s_lshr_b32 s48, s48, 8")
    A("s_mul_i32 s49, s48, 6")
    A(f"s_sub_u32 s{S_NT}, s47, s49")
    A(f"s_lshr_b32 s{S_KQ}, s46, 1")
    A("s_and_b32 s46, s46, 1")
    A("s_mul_i32 s49, s46, 5")
    A("s_add_u32 s49, s49, s48")
    A(f"s_mul_i32 s{S_GRP}, s49, 6")
    A(f"s_add_u32 s{S_GRP}, s{S_GRP}, s{S_NT}")
    A(f"s_mul_i32 s{S_ROW0}, s49, 12")
    A(f"s_add_u32 s{S_C}, s{S_NT}, s48")
    A(f"s_mul_i32 s{S_C}, s{S_C}, 3")
    A(f"s_and_b32 s{S_C}, s{S_C}, 15")
    if not opt.get("k2rot", True): A(f"s_mov_b32 s{S_C}, 0")
    A(f"v_lshlrev_b32 v{VBO}, 4, v{L}")
    A("s_mul_i32 s46, s3, 192")
    A("s_mov_b32 s47, 43691")
    for i in range(3):
        A(f"v_add_u32 v{t0}, s46, v{L}")
        if i: A(f"v_add_u32 v{t0}, {64*i}, v{t0}")
        A(f"v_mul_lo_u32 v{t1}, v{t0}, s47")
        A(f"v_lshrrev_b32 v{t1}, 19, v{t1}")
        A(f"v_mul_u32_u24 v{t2}, 12, v{t1}")
        A(f"v_sub_u32 v{t2}, v{t0}, v{t2}")
        A(f"v_bfe_u32 v{t3}, v{t1}, 2, 1")
        A(f"v_lshlrev_b32 v{t3}, 1, v{t3}")
        A(f"v_xor_b32 v{t2}, v{t2}, v{t3}")
        A(f"v_mul_u32_u24 v{t1}, 1152, v{t1}")
        A(f"v_lshl_add_u32 v{VWD+i}, v{t2}, 4, v{t1}")
    A("s_waitcnt lgkmcnt(0)")
    A("s_mul_i32 s46, s3, 3")
    A(f"s_add_u32 s46, s46, s{S_ROW0}")
    A("s_lshl_b32 s46, s46, 17")
    A(f"s_lshl_b32 s47, s{S_KQ}, 15")
    A("s_add_u32 s46, s46, s47")
    A(f"s_add_u32 s{SRD_O}, s40, s46")
    A(f"s_addc_u32 s{SRD_O+1}, s41, 0")
    A(f"s_sub_u32 s{SRD_O+2}, {120*131072}, s46")
    A(f"s_mov_b32 s{SRD_O+3}, 0x20000")
    A(f"s_mul_i32 s46, s{S_KQ}, 1179648")
    A(f"s_mul_i32 s47, s{S_NT}, 192")
    A("s_add_u32 s46, s46, s47")
    A(f"s_add_u32 s{SRD_WO}, s36, s46")
    A(f"s_addc_u32 s{SRD_WO+1}, s37, 0")
    A(f"s_sub_u32 s{SRD_WO+2}, {4096*1152}, s46")
    A(f"s_mov_b32 s{SRD_WO+3}, 0x20000")
    A("s_mul_i32 s31, s3, 3072")
    def loads(c):
        slot = c % 4
        ops = []
        first = [f"s_mul_i32 s42, s{S_C}, 73728", f"s_lshl_b32 s43, s{S_C}, 11"]
        for i in range(3):
            ops.append(((first if i == 0 else []) + [f"s_add_u32 m0, s31, {slot*12288 + i*1024}"],
                        f"buffer_load_dwordx4 v{VWD+i}, s[{SRD_WO}:{SRD_WO+3}], s42 offen {NT} lds"))
        k = 0
        for s_ in range(2):
            for mt in range(3):
                pre = [f"s_add_u32 s47, s43, {mt*131072 + s_*1024}"]
                if k == 5: pre += [f"s_add_u32 s{S_C}, s{S_C}, 1", f"s_and_b32 s{S_C}, s{S_C}, 15"]
                ops.append((pre, f"buffer_load_dwordx4 {vr(BF(slot, s_, mt))}, v{VBO}, s[{SRD_O}:{SRD_O+3}], s47 offen {NT}"))
                k += 1
        return ops
    def emit(ops):
        for p_, ld in ops:
            for x in p_: A(x)
            if "m0" in p_[-1]: A("s_nop 0")
            A(ld)
    emit(loads(0))
    A(f"v_lshrrev_b32 v{t0}, 4, v{L}")
    A(f"v_bfe_u32 v{t1}, v{L}, 2, 2")
    A(f"v_lshl_add_u32 v{t1}, v{t0}, 2, v{t1}")
    A(f"v_mul_u32_u24 v{t1}, 192, v{t1}")
    A(f"v_and_b32 v{t2}, 1, v{L}")
    A(f"v_lshl_add_u32 v{t1}, v{t2}, 3, v{t1}")
    A(f"v_bfe_u32 v{t2}, v{L}, 1, 1")
    A(f"v_lshl_add_u32 v{t1}, v{t2}, 4, v{t1}")
    A(f"v_and_b32 v{t0}, 1, v{t0}")
    for b in range(2):
        A(f"v_xor_b32 v{t2}, {b}, v{t0}")
        A(f"v_lshl_add_u32 v{VAR+b}, v{t2}, 5, v{t1}")
    A(f"s_mov_b32 s{SRD_OUT}, s38")
    A(f"s_mov_b32 s{SRD_OUT+1}, s39")
    A(f"s_mov_b32 s{SRD_OUT+2}, {1920*1152}")
    A(f"s_mov_b32 s{SRD_OUT+3}, 0x20000")
    A(f"s_mov_b32 s{SRD_P}, s40")
    A(f"s_mov_b32 s{SRD_P+1}, s41")
    A(f"s_mov_b32 s{SRD_P+2}, {PART_OFF + 60*16*18432}")
    A(f"s_mov_b32 s{SRD_P+3}, 0x20000")
    emit(loads(1))
    emit(loads(2))
    def areads(n):
        c, s_ = n // 2, n % 2
        buf = n & 1
        ops = []
        for nt in range(6):
            for t in range(2):
                r = AF(buf, nt) + 2*t
                ops.append(f"ds_read_b64_tr_b16 a[{r}:{r+1}], v{VAR + (nt & 1)} offset:{(c % 4)*12288 + s_*6144 + t*3072 + (nt >> 1)*64}")
        return ops
    A("s_waitcnt vmcnt(18)")
    A("s_barrier")
    if stamps: A("s_memrealtime s[62:63]")
    for x in areads(0): A(x)
    def step(n, first, do_load, last):
        c, s_ = n // 2, n % 2
        buf = n & 1
        mf = []
        for nt in range(6):
            for mt in range(3):
                acc = ACC(mt, nt)
                mf.append(f"v_mfma_f32_16x16x32_bf16 {ar(acc)}, {ar(AF(buf, nt))}, {vr(BF(c % 4, s_, mt))}, {'0' if first else ar(acc)}")
        A("s_waitcnt lgkmcnt(0)")
        sc = [[] for _ in mf]; vec = [[] for _ in mf]
        if s_ == 1 and not last:
            A(f"s_waitcnt vmcnt({9 if do_load != 'drain' else 0})")
            A("s_barrier")
        if not last:
            rd = areads(n + 1)
            for i_, x in enumerate(rd): vec[(i_ * 4) // 3].append(x)
        return mf, sc, vec
    def emit_step(mf, sc, vec):
        for m, s_, v_ in zip(mf, sc, vec):
            A(m)
            for x in s_: A(x)
            for x in v_: A(x)
    def place(ops, sc, vec, gaps):
        for (p_, ld), g in zip(ops, gaps):
            sc[g] += p_
            if "m0" in p_[-1]: sc[g].append("s_nop 0")
            vec[g].append(ld)
    def chunk(c, first=False, load=True, drain=False, last=False):
        mf, sc, vec = step(2*c, first, load, False)
        if pend: place(pend[:], sc, vec, [2, 6, 10, 14]); pend.clear()
        emit_step(mf, sc, vec)
        mf, sc, vec = step(2*c + 1, False, 'drain' if drain else load, last)
        if load:
            ops = loads(c + 3)
            place(ops[:5], sc, vec, [1, 5, 8, 12, 16])
            pend.extend(ops[5:])
        emit_step(mf, sc, vec)
    pend = []
    chunk(0, first=True)
    chunk(1); chunk(2); chunk(3)
    A("s_mov_b32 s44, 0")
    A.label("L2_loop")
    save = list(pend)
    for u in range(4): chunk(4 + u)
    A("s_add_u32 s44, s44, 1")
    A("s_cmp_lt_u32 s44, 2")
    A("s_cbranch_scc1 L2_loop")
    assert [x[1] for x in save] == [x[1] for x in pend]
    chunk(12)
    chunk(13, load=False, drain=False) if False else None
    def chunk_tail(c, n_after, last=False):
        mf, sc, vec = step(2*c, False, False, False)
        if pend: place(pend[:], sc, vec, [2, 6, 10, 14]); pend.clear()
        emit_step(mf, sc, vec)
        n = 2*c + 1
        buf = n & 1
        mf = []
        for nt in range(6):
            for mt in range(3):
                acc = ACC(mt, nt)
                mf.append(f"v_mfma_f32_16x16x32_bf16 {ar(acc)}, {ar(AF(buf, nt))}, {vr(BF(c % 4, 1, mt))}, {ar(acc)}")
        A("s_waitcnt lgkmcnt(0)")
        sc = [[] for _ in mf]; vec = [[] for _ in mf]
        if not last:
            A(f"s_waitcnt vmcnt({n_after})")
            A("s_barrier")
            for i_, x in enumerate(areads(n + 1)): vec[(i_ * 4) // 3].append(x)
        emit_step(mf, sc, vec)
    chunk_tail(13, 9)
    chunk_tail(14, 0)
    chunk_tail(15, 0, last=True)
    if stamps: A("s_memrealtime s[64:65]")
    A("s_barrier")
    A(f"s_lshl_b32 s46, s{S_GRP}, 2")
    A("s_nop 7")
    A(f"s_cmp_eq_u32 s3, s{S_KQ}")
    A("s_cbranch_scc1 L2_keep")
    A("s_add_u32 s47, s46, s3")
    A("s_lshl_b32 s47, s47, 2")
    A(f"s_add_u32 s47, s47, s{S_KQ}")
    A("s_mul_i32 s47, s47, 18432")
    A(f"s_add_u32 s47, s47, {PART_OFF}")
    for tl in range(18):
        if tl and tl % 4 == 0: A("s_add_u32 s47, s47, 4096")
        acc = 48 + tl*4
        A(f"buffer_store_dwordx4 {ar(acc)}, v{VBO}, s[{SRD_P}:{SRD_P+3}], s47 offen offset:{(tl % 4)*1024} sc1")
    A("s_branch L2_sent")
    A.label("L2_keep")
    for tl in range(18):
        A(f"ds_write_b128 v{VBO}, {ar(48 + tl*4)} offset:{tl*1024}")
    A.label("L2_sent")
    A("s_waitcnt vmcnt(0) lgkmcnt(0)")
    A("s_barrier")
    A("s_cmp_lg_u32 s3, 0")
    A("s_cbranch_scc1 L2_polled")
    A(f"s_add_u32 s47, s46, s{S_KQ}")
    A("s_lshl_b32 s47, s47, 7")
    A(f"s_add_u32 s47, s47, {FLAGS_OFF}")
    A(f"v_mov_b32 v{t0}, 1")
    A(f"v_mov_b32 v{t1}, 0")
    A(f"v_cmp_eq_u32 vcc, 0, v{L}")
    A("s_and_saveexec_b64 s[48:49], vcc")
    A(f"buffer_store_dword v{t0}, v{t1}, s[{SRD_P}:{SRD_P+3}], s47 offen sc1")
    A("s_mov_b64 exec, s[48:49]")
    A(f"v_and_b32 v{t1}, 3, v{L}")
    A(f"v_lshlrev_b32 v{t1}, 7, v{t1}")
    A("s_lshl_b32 s47, s46, 7")
    A(f"s_add_u32 s47, s47, {FLAGS_OFF}")
    A("s_mov_b32 s50, 0")
    A.label("L2_poll")
    A(f"buffer_load_dword v{t2}, v{t1}, s[{SRD_P}:{SRD_P+3}], s47 offen sc1")
    A("s_waitcnt vmcnt(0)")
    A(f"v_cmp_ne_u32 vcc, 1, v{t2}")
    A("s_add_u32 s50, s50, 1")
    A("s_nop 3")
    A("s_cmp_eq_u64 vcc, 0")
    A("s_cbranch_scc1 L2_polled")
    A("s_cmp_lt_u32 s50, 0x200000")
    A("s_cbranch_scc0 L2_polled")
    A("s_sleep 1")
    A("s_branch L2_poll")
    A.label("L2_polled")
    A("s_barrier")
    if stamps: A("s_memrealtime s[66:67]")
    A(f"s_add_u32 s47, s46, s{S_KQ}")
    A("s_lshl_b32 s47, s47, 2")
    for d in range(1, 4):
        A(f"s_add_u32 s48, s{S_KQ}, {d}")
        A("s_and_b32 s48, s48, 3")
        A("s_add_u32 s48, s48, s47")
        A("s_mul_i32 s48, s48, 18432")
        A(f"s_add_u32 s{50+d}, s48, {PART_OFF}")
    A("s_lshl_b32 s45, s3, 10")
    A(f"v_add_u32 v{t0}, s45, v{VBO}")
    R = lambda i, d: 32 + i*16 + d*4
    for i in range(5):
        if i == 4:
            A("s_cmp_ge_u32 s3, 2")
            A("s_cbranch_scc1 L2_ld_done")
        for d in range(1, 4):
            A(f"s_add_u32 s48, s{50+d}, {i*4096}")
            A(f"buffer_load_dwordx4 {vr(R(i, d))}, v{t0}, s[{SRD_P}:{SRD_P+3}], s48 offen sc1")
        A(f"ds_read_b128 {vr(R(i, 0))}, v{t0} offset:{i*4096}")
    A.label("L2_ld_done")
    A(f"v_and_b32 v{t1}, 15, v{L}")
    A(f"v_mul_u32_u24 v{t1}, 1152, v{t1}")
    A(f"v_lshrrev_b32 v{t2}, 4, v{L}")
    A(f"v_lshl_add_u32 v{t1}, v{t2}, 3, v{t1}")
    A(f"s_lshl_b32 s46, s{S_ROW0}, 4")
    A(f"s_mul_i32 s47, s{S_KQ}, 48")
    A("s_add_u32 s46, s46, s47")
    A("s_mul_i32 s46, s46, 1152")
    A(f"s_mul_i32 s47, s{S_NT}, 192")
    A("s_add_u32 s46, s46, s47")
    A("s_waitcnt vmcnt(0) lgkmcnt(0)")
    for i in range(5):
        if i == 4:
            A("s_cmp_ge_u32 s3, 2")
            A("s_cbranch_scc1 L2_fin")
        r0 = R(i, 0)
        for k in range(4):
            A(f"v_add_f32 v{r0+k}, v{r0+k}, v{r0+4+k}")
            A(f"v_add_f32 v{r0+8+k}, v{r0+8+k}, v{r0+12+k}")
        for k in range(4):
            A(f"v_add_f32 v{r0+k}, v{r0+k}, v{r0+8+k}")
        A(f"v_cvt_pk_bf16_f32 v{r0+4}, v{r0}, v{r0+1}")
        A(f"v_cvt_pk_bf16_f32 v{r0+5}, v{r0+2}, v{r0+3}")
        A(f"s_add_u32 s47, s3, {4*i}")
        A("s_mul_i32 s48, s47, 43")
        A("s_lshr_b32 s48, s48, 8")
        A("s_mul_i32 s49, s48, 6")
        A("s_sub_u32 s49, s47, s49")
        A("s_mul_i32 s48, s48, 18432")
        A("s_lshl_b32 s49, s49, 5")
        A("s_add_u32 s48, s48, s49")
        A("s_add_u32 s48, s48, s46")
        A(f"buffer_store_dwordx2 v[{r0+4}:{r0+5}], v{t1}, s[{SRD_OUT}:{SRD_OUT+3}], s48 offen")
    A.label("L2_fin")
    if stamps:
        A("s_waitcnt vmcnt(0)")
        A("s_memrealtime s[68:69]")
        A("s_waitcnt lgkmcnt(0)")
        A("s_cmp_lg_u32 s3, 0")
        A("s_cbranch_scc1 L2_done")
        for i_, r in enumerate([60, 62, 64, 66, 68]):
            A(f"v_mov_b32 v{8+i_}, s{r}")
        A("s_lshl_b32 s46, s2, 5")
        A("s_add_u32 s46, s46, 0x1010000")
        A("v_mov_b32 v16, s46")
        A(f"v_cmp_eq_u32 vcc, 0, v{VLANE}")
        A("s_and_saveexec_b64 s[48:49], vcc")
        A("s_cbranch_execz L2_done")
        A(f"buffer_store_dwordx4 v[8:11], v16, s[{SRD_P}:{SRD_P+3}], 0 offen")
        A(f"buffer_store_dword v12, v16, s[{SRD_P}:{SRD_P+3}], 0 offen offset:16")
    A.label("L2_done")
    A("s_endpgm")
```

```python
import sys, math, struct, copy
from asmlib import *

K1 = 'attn_kernel'
K2 = 'oproj_kernel'
SCALE = (128 ** -0.5) * math.log2(math.e)
def f2u(x): return struct.unpack("<I", struct.pack("<f", x))[0]

KRING, VRING = 0, 65536
XS = [16384, 49152, 81920]
WS = [114688, 131072, 147456]
LDS_K1 = 163840
SB = lambda e, j, kt: e*32 + (j*2 + kt)*4
PB = lambda e, j: 64 + e*16 + j*4
NEGM = lambda j: 96 + j*4
QACC = lambda T, j: (T*4 + j)*4
QF = lambda j, m: 128 + (j*4 + m)*4
VKR = 192
VVR = 196
VKD = 204
VVD = 208
VXR = 210
VWR = 214
VXD = 218
VWD = 220
VLANE = 221
VT = 222
OA = lambda dt, j: (dt*4 + j)*4
KF = lambda kt, ks: 128 + (kt*4 + ks)*4
VF = lambda dt: 160 + dt*4
LA = lambda j: 192 + j*4
ONES = 208
WF = lambda buf, T: buf*32 + T*4
XF = lambda buf, j: 64 + buf*16 + j*4
S_W = 3
SRD_K, SRD_V, SRD_X, SRD_W, SRD_O = 8, 12, 16, 20, 24
S_KOFF, S_VOFF, S_GRP = 28, 29, 30
S_B, S_H = 32, 33
S_XB, S_WB = 34, 35
S_ROT, S_XO, S_WO = 50, 51, 52

def vr(n, c=4): return f"v[{n}:{n+c-1}]"
def ar(n, c=4): return f"a[{n}:{n+c-1}]"
def mf16(d, a_, b_, c): return f"v_mfma_f32_16x16x32_bf16 {d}, {a_}, {b_}, {c}"

class VmTracker:
    def __init__(self): self.q = []
    def issue(self, tag): self.q.append(tag)
    def need(self, tags):
        last = -1
        for i, t in enumerate(self.q):
            if t in tags: last = i
        if last < 0: return 63
        return min(63, len(self.q) - 1 - last)

class Gaps:
    def __init__(self, mf):
        self.mf = mf
        self.G = len(mf)
        self.sc = [[] for _ in mf]
        self.vec = [[] for _ in mf]
        self.before = [[] for _ in mf]
    def emit(self, A):
        for g, m in enumerate(self.mf):
            for x in self.before[g]: A(x)
            A(m)
            for x in self.sc[g]: A(x)
            for x in self.vec[g]: A(x)

def fill_gaps(gp, estream, dstream, start=0, nslots=2):
    G = gp.G
    ei = di = 0
    last_exp = False
    for g in range(start, G):
        remaining_gaps = G - g
        ne = sum(1 for k, _ in estream[ei:] if k == 'e')
        singles = []
        def d_ok(): return di < len(dstream) and dstream[di][0] <= g
        want_exp = ei < len(estream) and estream[ei][0] == 'e' and (not last_exp or ne >= remaining_gaps or not (d_ok()))
        if want_exp:
            gp.vec[g].append(estream[ei][1]); ei += 1
            last_exp = True
            continue
        last_exp = False
        n = 0
        while n < nslots:
            if ei < len(estream) and estream[ei][0] == 'c':
                gp.vec[g].append(estream[ei][1]); ei += 1; n += 1
            elif d_ok():
                e_, pre_, txt = dstream[di]; di += 1
                gp.sc[g] += pre_
                if pre_ and any("m0" in x for x in pre_) and pre_[-1].find("m0") >= 0:
                    gp.sc[g].append("s_nop 0")
                gp.vec[g].append(txt); n += 1
            else:
                break
    tail = [t for _, t in estream[ei:]]
    dtail = dstream[di:]
    return tail, dtail

def softmax_stream(e, nj):
    st = []
    for j in range(nj):
        for kt in range(2):
            S = SB(e, j, kt)
            for h in range(2):
                st.append(('e', f"v_exp_f32 v{S+2*h}, v{S+2*h}"))
                st.append(('e', f"v_exp_f32 v{S+2*h+1}, v{S+2*h+1}"))
                st.append(('c', f"v_cvt_pk_bf16_f32 v{PB(e, j) + 2*kt + h}, v{S+2*h}, v{S+2*h+1}"))
    return st

def gen_k1(A, opt):
    NT = opt.get("nt", "nt")
    LV = opt.get("lv", 3); LK = LV + 3
    stamps = opt.get("stamps", False)
    QNT = opt.get("qnt", ""); ONT = opt.get("ont", "sc1")
    ROT = opt.get("rot", True)
    kernel_begin(A, K1)
    A("s_cmp_ge_u32 s2, 256")
    A("s_cbranch_scc1 L1_done")
    A("s_load_dwordx8 s[36:43], s[0:1], 0")
    A("s_load_dwordx2 s[44:45], s[0:1], 56")
    if stamps: A("s_memrealtime s[60:61]")
    L = VLANE
    t0, t1, t2, t3, t4, t5, t6, t7 = [VT + i for i in range(8)]
    A(f"v_and_b32 v{L}, 63, v0")
    A(f"v_lshrrev_b32 v{t0}, 6, v0")
    A("s_and_b32 s46, s2, 7")
    A("s_lshr_b32 s47, s2, 3")
    A(f"v_readfirstlane_b32 s{S_W}, v{t0}")
    A("s_and_b32 s48, s46, 1")
    A("s_lshl_b32 s48, s48, 2")
    A("s_and_b32 s49, s47, 3")
    A(f"s_add_u32 s{S_B}, s48, s49")
    A("s_lshr_b32 s48, s46, 1")
    A("s_lshl_b32 s48, s48, 3")
    A("s_lshr_b32 s53, s47, 2")
    A(f"s_add_u32 s{S_H}, s48, s53")
    A("s_lshl_b32 s49, s49, 1")
    A(f"s_add_u32 s{S_ROT}, s49, s53")
    A(f"s_cmp_ge_u32 s{S_ROT}, 9")
    A("s_cselect_b32 s49, 9, 0")
    A(f"s_sub_u32 s{S_ROT}, s{S_ROT}, s49")
    if not ROT: A(f"s_mov_b32 s{S_ROT}, 0")
    A(f"s_lshl_b32 s{S_XB}, s{S_W}, 13")
    A(f"s_lshl_b32 s{S_WB}, s{S_W}, 12")
    A(f"v_lshrrev_b32 v{t0}, 3, v{L}")
    A(f"s_lshl_b32 s46, s{S_W}, 6")
    A(f"v_add_u32 v{t0}, s46, v{t0}")
    A(f"v_mul_u32_u24 v{t0}, 1152, v{t0}")
    A(f"v_and_b32 v{t1}, 7, v{L}")
    A(f"v_lshrrev_b32 v{t2}, 4, v{L}")
    A(f"v_xor_b32 v{t3}, v{t1}, v{t2}")
    A(f"v_lshl_add_u32 v{VXD}, v{t3}, 4, v{t0}")
    A(f"v_xor_b32 v{t3}, 4, v{t3}")
    A(f"v_lshl_add_u32 v{VXD+1}, v{t3}, 4, v{t0}")
    A(f"v_and_b32 v{t1}, 15, v{L}")
    A(f"v_lshlrev_b32 v{t3}, 2, v{t2}")
    A(f"v_xor_b32 v{t3}, v{t1}, v{t3}")
    A(f"s_lshl_b32 s46, s{S_W}, 4")
    A(f"v_add_u32 v{t4}, s46, v{t2}")
    A(f"v_lshlrev_b32 v{t4}, 13, v{t4}")
    A(f"v_lshl_add_u32 v{VWD}, v{t3}, 4, v{t4}")
    A("s_waitcnt lgkmcnt(0)")
    A(f"s_mul_i32 s46, s{S_B}, 276480")
    A(f"s_add_u32 s{SRD_X}, s36, s46")
    A(f"s_addc_u32 s{SRD_X+1}, s37, 0")
    A(f"s_mov_b32 s{SRD_X+2}, 276480")
    A(f"s_mov_b32 s{SRD_X+3}, 0x20000")
    A(f"s_lshl_b32 s46, s{S_H}, 8")
    A(f"s_add_u32 s{SRD_W}, s42, s46")
    A(f"s_addc_u32 s{SRD_W+1}, s43, 0")
    A(f"s_sub_u32 s{SRD_W+2}, {576*8192}, s46")
    A(f"s_mov_b32 s{SRD_W+3}, 0x20000")

    def rest_of_setup():
        A(f"s_lshl_b32 s46, s{S_B}, 5")
        A(f"s_add_u32 s46, s46, s{S_H}")
        A(f"s_lshl_b32 s46, s46, 19")
        A(f"s_add_u32 s{SRD_K}, s38, s46")
        A(f"s_addc_u32 s{SRD_K+1}, s39, 0")
        A(f"s_mov_b32 s{SRD_K+2}, 524288")
        A(f"s_mov_b32 s{SRD_K+3}, 0x20000")
        A(f"s_add_u32 s{SRD_V}, s40, s46")
        A(f"s_addc_u32 s{SRD_V+1}, s41, 0")
        A(f"s_mov_b32 s{SRD_V+2}, 524288")
        A(f"s_mov_b32 s{SRD_V+3}, 0x20000")
        A(f"s_mov_b32 s{SRD_O}, s44")
        A(f"s_mov_b32 s{SRD_O+1}, s45")
        A(f"s_mov_b32 s{SRD_O+2}, 0x2000000")
        A(f"s_mov_b32 s{SRD_O+3}, 0x20000")
        A(f"v_and_b32 v{t0}, 15, v{L}")
        A(f"v_lshrrev_b32 v{t1}, 4, v{L}")
        A(f"v_bfe_u32 v{t2}, v{L}, 2, 2")
        A(f"v_and_b32 v{t3}, 3, v{L}")
        for ks in range(4):
            A(f"v_add_u32 v{t4}, {4*ks}, v{t1}")
            A(f"v_xor_b32 v{t4}, v{t4}, v{t0}")
            A(f"v_lshlrev_b32 v{t4}, 4, v{t4}")
            A(f"v_lshl_add_u32 v{VKR+ks}, v{t0}, 8, v{t4}")
        A(f"v_lshl_add_u32 v{t5}, v{t1}, 2, v{t2}")
        A(f"v_and_b32 v{t6}, 7, v{t5}")
        A(f"v_lshrrev_b32 v{t7}, 1, v{t3}")
        A(f"v_and_b32 v{VT+8}, 1, v{t3}")
        A(f"v_lshlrev_b32 v{VT+8}, 3, v{VT+8}")
        A(f"v_lshl_add_u32 v{VT+8}, v{t5}, 8, v{VT+8}")
        A(f"v_add_u32 v{VT+8}, {VRING}, v{VT+8}")
        for dt in range(8):
            A(f"v_xor_b32 v{t4}, {dt}, v{t6}")
            A(f"v_lshl_add_u32 v{t4}, v{t4}, 1, v{t7}")
            A(f"v_lshl_add_u32 v{VVR+dt}, v{t4}, 4, v{VT+8}")
        A(f"v_bfe_u32 v{t5}, v{t0}, 1, 3")
        A(f"v_lshlrev_b32 v{t6}, 7, v{t0}")
        A(f"v_add_u32 v{t6}, s{S_XB}, v{t6}")
        for s_ in range(2):
            A(f"v_add_u32 v{t4}, {4*s_}, v{t1}")
            A(f"v_xor_b32 v{t4}, v{t4}, v{t5}")
            A(f"v_lshl_add_u32 v{VXR+s_}, v{t4}, 4, v{t6}")
            A(f"v_add_u32 v{VXR+2+s_}, 65536, v{VXR+s_}")
        A(f"v_lshl_add_u32 v{t5}, v{t1}, 3, v{t2}")
        A(f"v_lshlrev_b32 v{t5}, 8, v{t5}")
        A(f"v_add_u32 v{t5}, {WS[0]}, v{t5}")
        for m in range(4):
            A(f"v_xor_b32 v{t4}, {m}, v{t2}")
            A(f"v_lshl_add_u32 v{t4}, v{t4}, 2, v{t3}")
            A(f"v_lshl_add_u32 v{VWR+m}, v{t4}, 4, v{t5}")
        for b in range(4):
            A(f"v_add_u32 v{t4}, {4*b}, v{t1}")
            A(f"v_xor_b32 v{t4}, v{t4}, v{t0}")
            A(f"v_lshlrev_b32 v{t4}, 4, v{t4}")
            A(f"v_lshl_add_u32 v{VKD+b}, v{t1}, 8, v{t4}")
        for b in range(2):
            A(f"v_add_u32 v{t4}, {4*b}, v{t1}")
            A(f"v_lshlrev_b32 v{t4}, 1, v{t4}")
            A(f"v_xor_b32 v{t4}, v{t4}, v{t0}")
            A(f"v_lshlrev_b32 v{t4}, 4, v{t4}")
            A(f"v_lshl_add_u32 v{VVD+b}, v{t1}, 8, v{t4}")

    def dma_chunk(c, nj):
        st = c % 3
        ops = []
        first = [f"s_lshl_b32 s{S_XO}, s{S_ROT}, 7", f"s_lshl_b32 s{S_WO}, s{S_ROT}, 19"]
        for p in range(2*nj):
            ops.append(((first if p == 0 else []) + [f"s_add_u32 m0, s{S_XB}, {XS[st] + p*1024}", f"s_add_u32 s46, s{S_XO}, {p*9216}"],
                        f"buffer_load_dwordx4 v{VXD + (p & 1)}, s[{SRD_X}:{SRD_X+3}], s46 offen {QNT} lds", ("c", c)))
        for p in range(4):
            adv = [f"s_add_u32 s{S_ROT}, s{S_ROT}, 1", f"s_cmp_eq_u32 s{S_ROT}, 9", f"s_cselect_b32 s{S_ROT}, 0, s{S_ROT}"] if p == 0 else []
            ops.append((adv + [f"s_add_u32 m0, s{S_WB}, {WS[st] + p*1024}", f"s_add_u32 s46, s{S_WO}, {p*32768}"],
                        f"buffer_load_dwordx4 v{VWD}, s[{SRD_W}:{SRD_W+3}], s46 offen {QNT} lds", ("c", c)))
        return ops
    def dma_tile(kind, t, dyn, ldsbase=None):
        srd = SRD_K if kind == "k" else SRD_V
        base = ((KRING if kind == "k" else VRING) + (t % 8)*8192) if ldsbase is None else ldsbase
        ops = []
        for a_ in range(2):
            for b in range(4):
                pre = []
                if b == 0:
                    if dyn is None: pre = [f"s_mov_b32 s47, {t*8192 + a_*4096}"]
                    elif a_ == 0: pre = [f"s_add_u32 {dyn}, {dyn}, 8192", f"s_mov_b32 s47, {dyn}"]
                    else: pre = [f"s_add_u32 s47, {dyn}, 4096"]
                    if isinstance(base, str): pre.append(f"s_add_u32 m0, {base}, {(0 if kind == 'k' else VRING) + a_*4096}")
                    else: pre.append(f"s_mov_b32 m0, {base + a_*4096}")
                vo = VKD + b if kind == "k" else VVD + (b & 1)
                off = f" offset:{b*1024}" if b else ""
                ops.append((pre, f"buffer_load_dwordx4 v{vo}, s[{srd}:{srd+3}], s47 offen{off} {NT} lds", (kind, t)))
        return ops

    def emit_dma(vm, ops):
        for pre_, ld, tag in ops:
            for x in pre_: A(x)
            if pre_ and "m0" in pre_[-1]: A("s_nop 0")
            A(ld); vm.issue(tag)

    A(f"s_cmp_eq_u32 s{S_W}, 3")
    A("s_cbranch_scc1 L1_w3")

    def body(nj, sfx):
        loader = (nj == 3)
        vm = VmTracker()
        emit_dma(vm, dma_chunk(0, nj))
        rest_of_setup()
        if not loader:
            A(f"s_cmp_lg_u32 s{S_W}, 0")
            A(f"s_cbranch_scc1 L1_noflag")
            A("s_lshl_b32 s46, s2, 7")
            A("s_add_u32 s46, s46, 0x1080000")
            A(f"v_mov_b32 v{VT}, 0")
            A(f"v_cmp_eq_u32 vcc, 0, v{L}")
            A("s_and_saveexec_b64 s[48:49], vcc")
            A(f"buffer_store_dword v{VT}, v{VT}, s[{SRD_O}:{SRD_O+3}], s46 offen")
            A("s_mov_b64 exec, s[48:49]")
            A("s_waitcnt vmcnt(0)") if False else None
            A.label("L1_noflag")
        emit_dma(vm, dma_chunk(1, nj))

        def rd_step(n):
            c, s_ = n // 2, n % 2
            st, buf = c % 3, n & 1
            xs = []
            for j in range(nj):
                off = XS[st] + j*2048
                reg = VXR + s_
                if off >= 65536: off -= 65536; reg += 2
                xs.append(f"ds_read_b128 {ar(XF(buf, j))}, v{reg} offset:{off}")
            ws = []
            for T in range(8):
                for t in range(2):
                    r = WF(buf, T) + 2*t
                    ws.append(f"ds_read_b64_tr_b16 a[{r}:{r+1}], v{VWR + (T >> 1)} offset:{(WS[st]-WS[0]) + s_*8192 + t*1024 + 8*(T & 1)}")
            return [xs[0]] + ws[0:2] + xs[1:] + ws[2:]
        A(f"s_waitcnt vmcnt({vm.need({('c',0)})})")
        A("s_barrier")
        if stamps and not loader: A("s_memrealtime s[62:63]")
        for x in rd_step(0): A(x)
        pend = [(0, op) for op in dma_chunk(2, nj)]
        if loader:
            pend += [(0, op) for op in dma_tile("k", 0, None)] + [(0, op) for op in dma_tile("k", 1, None)]
        def k_reads(t):
            return [f"ds_read_b128 {ar(KF(kt, ks))}, v{VKR+ks} offset:{KRING + (t % 8)*8192 + kt*4096}" for kt in range(2) for ks in range(4)]
        def v_reads(t):
            return [f"ds_read_b64_tr_b16 a[{VF(dt)+2*tt}:{VF(dt)+2*tt+1}], v{VVR+dt} offset:{(t % 8)*8192 + tt*4096}" for dt in range(8) for tt in range(2)]
        NSTEP = 18
        for n in range(NSTEP):
            c, s_ = n // 2, n % 2
            buf = n & 1
            mf = []
            for T in range(8):
                for j in range(nj):
                    d = QACC(T, j)
                    mf.append(mf16(vr(d), ar(WF(buf, T)), ar(XF(buf, j)), "0" if n == 0 else vr(d)))
            gp = Gaps(mf)
            gp.before[0].append("s_waitcnt lgkmcnt(0)")
            ds = []
            if s_ == 1:
                if c + 1 <= 8: gp.before[0].append(f"s_waitcnt vmcnt({vm.need({('c', c+1)})})")
                elif loader: gp.before[0].append(f"s_waitcnt vmcnt({vm.need({('k', 0), ('k', 1)})})")
                if opt.get("qstamps") and not loader: gp.before[0].append(f"s_memtime s[{74+2*c}:{75+2*c}]") if False else None
                gp.before[0].append("s_barrier")
                if opt.get("qstamps") and not loader: gp.before[0].append(f"s_memtime s[{74+2*c}:{75+2*c}]")
                if c + 3 <= 8: pend += [(n, op) for op in dma_chunk(c + 3, nj)]
                if loader:
                    if c == 6: pend += [(n, op) for t in range(2, 6) for op in dma_tile("k", t, None)]
                    if c == 7: pend += [(n, op) for t in (6, 7) for op in dma_tile("k", t, None)] + [(n, op) for t in (0, 1) for op in dma_tile("v", t, None)]
                    if c == 8: pend += [(n, op) for t in range(2, LV) for op in dma_tile("v", t, None)]
            if n + 1 < NSTEP: rd = rd_step(n + 1)
            else: rd = k_reads(0)
            for x in rd: ds.append((0, [], x))
            G = gp.G
            span = G - opt.get("qrd_margin", 6)
            for i_, (_, _, x) in enumerate(ds): gp.vec[(i_ * span) // len(ds)].append(x)
            maxd = opt.get("qdma", 6) if not loader else opt.get("qdma3", 10)
            k_ = 0
            while pend and k_ < maxd and pend[0][0] <= n:
                _, (pre_, ld, tag) = pend.pop(0)
                g = 1 + (k_ * (G - 1)) // maxd
                gp.sc[g] += pre_
                if pre_ and "m0" in pre_[-1]: gp.sc[g].append("s_nop 0")
                gp.vec[g].append(ld); vm.issue(tag)
                k_ += 1
            gp.emit(A)
        if stamps and not loader: A("s_memrealtime s[64:65]")
        emit_dma(vm, [op for _, op in pend]); pend = []
        A(f"s_mov_b32 s46, {hex(f2u(SCALE))}")
        A("s_mov_b32 s47, s46")
        A("s_nop 4")
        for m in range(4):
            for j in range(nj):
                for e_ in range(2):
                    d = QACC(2*m + e_, j)
                    A(f"v_pk_mul_f32 v[{d}:{d+1}], v[{d}:{d+1}], s[46:47]")
                    A(f"v_pk_mul_f32 v[{d+2}:{d+3}], v[{d+2}:{d+3}], s[46:47]")
                for e_ in range(2):
                    d = QACC(2*m + e_, j)
                    A(f"v_cvt_pk_bf16_f32 v{QF(j, m) + 2*e_}, v{d}, v{d+1}")
                    A(f"v_cvt_pk_bf16_f32 v{QF(j, m) + 2*e_ + 1}, v{d+2}, v{d+3}")
        def qk_mfmas(e, first_c):
            mf = []
            for kt in range(2):
                for j in range(nj):
                    d = SB(e, j, kt)
                    for ks in range(4):
                        mf.append(mf16(vr(d), ar(KF(kt, ks)), vr(QF(j, ks)), first_c(j) if ks == 0 else vr(d)))
            return mf
        def pv_mfmas(e, zero_c=False):
            mf = []
            for dt in range(8):
                for j in range(nj):
                    o = OA(dt, j)
                    mf.append(mf16(ar(o), ar(VF(dt)), vr(PB(e, j)), "0" if zero_c else ar(o)))
                if dt % 2 == 1 and dt // 2 < nj:
                    j = dt // 2
                    mf.append(mf16(ar(LA(j)), ar(ONES), vr(PB(e, j)), "0" if zero_c else ar(LA(j))))
            return mf
        A("s_waitcnt lgkmcnt(0)")
        A(f"v_mov_b32 v{VT}, 0x3f803f80")
        mf = qk_mfmas(0, lambda j: "0")
        gp = Gaps(mf)
        k1r = k_reads(1)
        half = len(mf) // 2
        for i_ in range(4): gp.vec[half + i_].append(k1r[i_])
        for i_ in range(4): gp.vec[i_].append(f"v_accvgpr_write_b32 a{ONES+i_}, v{VT}")
        gp.emit(A)
        for i_ in range(4): A(k1r[4 + i_])
        A("s_nop 3")
        for j in range(nj):
            a0, a1 = SB(0, j, 0), SB(0, j, 1)
            m_ = VT + j
            A(f"v_max3_f32 v{m_}, v{a0}, v{a0+1}, v{a0+2}")
            A(f"v_max3_f32 v{m_}, v{m_}, v{a0+3}, v{a1}")
            A(f"v_max3_f32 v{m_}, v{m_}, v{a1+1}, v{a1+2}")
            A(f"v_max_f32 v{m_}, v{m_}, v{a1+3}")
        def xlane(op):
            for swp in ("v_permlane16_swap_b32", "v_permlane32_swap_b32"):
                for j in range(nj): A(f"v_mov_b32 v{VT+4+j}, v{VT+j}")
                A("s_nop 1")
                for j in range(nj): A(f"{swp} v{VT+j}, v{VT+4+j}")
                A("s_nop 1")
                for j in range(nj): A(f"{op} v{VT+j}, v{VT+j}, v{VT+4+j}")
        xlane("v_max_f32")
        for j in range(nj):
            A(f"v_sub_f32 v{VT+j}, 0, v{VT+j}")
        for j in range(nj):
            for i_ in range(4): A(f"v_mov_b32 v{NEGM(j)+i_}, v{VT+j}")
            for kt in range(2):
                for i_ in range(4): A(f"v_add_f32 v{SB(0,j,kt)+i_}, v{SB(0,j,kt)+i_}, v{VT+j}")
        if loader:
            A(f"s_mov_b32 s{S_KOFF}, {7*8192}")
            A(f"s_mov_b32 s{S_VOFF}, {(LV-1)*8192}")
            A(f"s_waitcnt vmcnt({vm.need({('k', 2)})}) lgkmcnt(0)")
        else:
            A("s_waitcnt lgkmcnt(0)")
        A("s_barrier")
        if stamps and not loader: A("s_memrealtime s[66:67]")
        negm = lambda j: vr(NEGM(j))

        def iteration(i, do_qk=True, do_pv=True, zero_c=False, extra_dma=None):
            e = i & 1
            mf = []
            if do_qk: mf += qk_mfmas(e ^ 1, negm)
            nq = len(mf)
            if do_pv: mf += pv_mfmas(e ^ 1, zero_c)
            gp = Gaps(mf)
            est = softmax_stream(e, nj)
            dst = []
            if do_pv and do_qk:
                for x in v_reads(i - 1): dst.append((0, [], x))
            if do_qk:
                kr = k_reads(i + 2)
                for i_ in range(4): dst.append((nq // 2, [], kr[i_]))
                for i_ in range(4): dst.append((nq, [], kr[4 + i_]))
            if loader and do_qk:
                ops = (extra_dma or []) + dma_tile("v", i + LV, f"s{S_VOFF}") + (dma_tile("k", i + LK, f"s{S_KOFF}") if i + LK >= 8 else [])
                merged = []
                nd = len(dst)
                step = max(1, nd) / max(1, len(ops))
                oi = 0
                for k_, d_ in enumerate(dst):
                    merged.append(d_)
                    while oi < len(ops) and (oi + 1) * step <= k_ + 1:
                        merged.append((d_[0], ops[oi][0], ops[oi][1])); vm.issue(ops[oi][2]); oi += 1
                while oi < len(ops):
                    merged.append((0, ops[oi][0], ops[oi][1])); vm.issue(ops[oi][2]); oi += 1
                dst = merged
            if not do_pv:
                nslots = 3
            else:
                nslots = 3 if loader else 2
            tail, dtail = fill_gaps(gp, est, dst, nslots=nslots)
            if do_pv and do_qk:
                order = [x for g in range(nq) for x in gp.vec[g] if x.startswith("ds_")]
                nv = sum(1 for x in order if "tr_b16" in x)
                if nv == 16:
                    after = len(order) - 1 - max(k for k, x in enumerate(order) if "tr_b16" in x)
                    gp.sc[nq - 1].append(f"s_waitcnt lgkmcnt({after})")
                else:
                    allorder = [(g, x) for g in range(gp.G) for x in gp.vec[g] if x.startswith("ds_")]
                    vpos = [k for k, (g, x) in enumerate(allorder) if "tr_b16" in x]
                    per = nj
                    g = nq
                    for dt in range(8):
                        gm = next(k for k, m in enumerate(mf) if k >= nq and ar(VF(dt)) in m)
                        need_pos = vpos[2*dt + 1]
                        assert allorder[need_pos][0] < gm, (i, dt, allorder[need_pos][0], gm)
                        issued = sum(1 for (gg, x) in allorder if gg < gm)
                        gp.sc[gm - 1].append(f"s_waitcnt lgkmcnt({min(15, issued - 1 - need_pos)})")
            gp.emit(A)
            if tail: A("s_nop 0")
            for x in tail: A(x)
            for e_, pre_, txt in dtail:
                for x in pre_: A(x)
                if pre_ and "m0" in pre_[-1]: A("s_nop 0")
                A(txt)
        def end_wait(i):
            if not loader: return "s_waitcnt lgkmcnt(0)"
            tags = {("v", i)}
            if i + 3 <= 63: tags.add(("k", i + 3))
            return vm.need(tags)
        extra = None
        if loader and LK > 8:
            extra = []
            for t in range(8, LK): extra += dma_tile("k", t, f"s{S_KOFF}")
        iteration(0, do_pv=False, extra_dma=extra)
        w = end_wait(0)
        A(f"s_waitcnt vmcnt({w}) lgkmcnt(0)" if loader else w)
        A("s_barrier")
        iteration(1, zero_c=True)
        w = end_wait(1)
        A(f"s_waitcnt vmcnt({w}) lgkmcnt(0)" if loader else w)
        A("s_barrier")
        A(f"s_mov_b32 s{S_GRP}, 0")
        A(f"s_branch L1_pos2{sfx}")
        npos = {}
        if loader:
            save_q, save_lines = list(vm.q), A.lines
            A.lines = []
            ns = {}
            for i in range(2, 63):
                iteration(i); ns[i] = end_wait(i)
            A.lines = save_lines
            npos = {p: min(ns[i] for i in range(2, 63) if i % 8 == p) for p in range(8)}
            vm.q = save_q
        A(".p2align 6")
        for p in range(8):
            A.label(f"L1_pos{p}{sfx}")
            iteration(8 + p)
            A(f"s_waitcnt vmcnt({npos[p]}) lgkmcnt(0)" if loader else "s_waitcnt lgkmcnt(0)")
            if p == 6:
                A(f"s_cmp_eq_u32 s{S_GRP}, 7")
                A("s_barrier")
                A(f"s_cbranch_scc1 L1_tail{sfx}")
            elif p == 7:
                A(f"s_add_u32 s{S_GRP}, s{S_GRP}, 1")
                A("s_barrier")
                A(f"s_branch L1_pos0{sfx}")
            else:
                A("s_barrier")
        A.label(f"L1_tail{sfx}")
        if stamps and not loader: A("s_memrealtime s[68:69]")
        e = 1
        for x in v_reads(62): A(x)
        mf = pv_mfmas(e ^ 1)
        gp = Gaps(mf)
        est = softmax_stream(e, nj)
        gp.before[0].append("s_waitcnt lgkmcnt(0)")
        if loader: gp.before[0].append("s_waitcnt vmcnt(0)")
        gp.before[0].append("s_barrier")
        vr63 = v_reads(63)
        dst = []
        for dt in range(8):
            gm = max(k for k, m in enumerate(mf) if ar(VF(dt)) in m)
            dst += [(gm + 1 if gm + 1 < len(mf) else gm, [], x) for x in vr63[2*dt:2*dt+2]]
        tail, dtail = fill_gaps(gp, est, dst, nslots=3)
        gp.emit(A)
        if tail: A("s_nop 0")
        for x in tail: A(x)
        for e_, pre_, txt in dtail: A(txt)
        A("s_waitcnt lgkmcnt(0)")
        A("s_barrier")
        for m in pv_mfmas(e): A(m)
        A("s_nop 7")
        for j in range(nj): A(f"v_accvgpr_read_b32 v{VT+j}, a{LA(j)}")
        A(f"s_mov_b32 s47, {hex(f2u(2.0**40))}")
        A("s_mov_b64 s[48:49], 0")
        for j in range(nj):
            A(f"v_cmp_ngt_f32 vcc, s47, v{VT+j}")
            A("s_nop 3")
            A("s_or_b64 s[48:49], s[48:49], vcc")
        A("s_cmp_eq_u64 s[48:49], 0")
        A(f"s_cbranch_scc0 L1_slow{sfx}")
        A.label(f"L1_norm{sfx}")
        for j in range(nj): A(f"v_rcp_f32 v{VT+4+j}, v{VT+j}")
        A(f"s_mul_i32 s46, s{S_B}, 15")
        A(f"s_lshl_b32 s47, s{S_W}, 2")
        A("s_add_u32 s46, s46, s47")
        A("s_lshl_b32 s46, s46, 17")
        A(f"s_lshl_b32 s47, s{S_H}, 12")
        A("s_add_u32 s46, s46, s47")
        A(f"v_lshlrev_b32 v{VT+8}, 4, v{L}")
        k_ = 0
        for j in range(nj):
            A(f"s_add_u32 s47, s46, {j*131072}")
            for m in range(4):
                base = (k_ % 6) * 12; k_ += 1
                for e_ in range(2):
                    o = OA(2*m + e_, j)
                    for i_ in range(4): A(f"v_accvgpr_read_b32 v{base+4*e_+i_}, a{o+i_}")
                for i_ in range(0, 8, 2):
                    A(f"v_pk_mul_f32 v[{base+i_}:{base+i_+1}], v[{base+i_}:{base+i_+1}], v[{VT+4+j-((VT+4+j)%2)}:{VT+5+j-((VT+4+j)%2)}] op_sel:[0,{(VT+4+j)%2}] op_sel_hi:[1,{(VT+4+j)%2}]")
                for i_ in range(4):
                    A(f"v_cvt_pk_bf16_f32 v{base+8+i_}, v{base+2*i_}, v{base+2*i_+1}")
                A(f"buffer_store_dwordx4 v[{base+8}:{base+11}], v{VT+8}, s[{SRD_O}:{SRD_O+3}], s47 offen offset:{m*1024} {ONT}")
        if stamps and not loader:
            A("s_memrealtime s[70:71]")
            A("s_waitcnt lgkmcnt(0) vmcnt(0)")
            A("s_memrealtime s[72:73]")
            A("s_waitcnt lgkmcnt(0)")
            A(f"s_cmp_lg_u32 s{S_W}, 0")
            A("s_cbranch_scc1 L1_done")
            A(f"s_mov_b32 s{SRD_O+2}, 0x20000000")
            for i_, r in enumerate([60, 62, 64, 66, 68, 70, 72]):
                A(f"v_mov_b32 v{i_}, s{r}")
            A("v_mov_b32 v7, s61")
            A("s_lshl_b32 s46, s2, 5")
            A("s_add_u32 s46, s46, 0x1000000")
            A("v_mov_b32 v8, s46")
            A(f"v_cmp_eq_u32 vcc, 0, v{L}")
            A("s_and_saveexec_b64 s[48:49], vcc")
            A("s_cbranch_execz L1_done")
            A(f"buffer_store_dwordx4 v[0:3], v8, s[{SRD_O}:{SRD_O+3}], 0 offen")
            A(f"buffer_store_dwordx4 v[4:7], v8, s[{SRD_O}:{SRD_O+3}], 0 offen offset:16")
            if opt.get("qstamps"):
                for i_ in range(9): A(f"v_mov_b32 v{12+i_}, s{74+2*i_}")
                A("s_lshl_b32 s46, s2, 6")
                A("s_add_u32 s46, s46, 0x1020000")
                A("v_mov_b32 v8, s46")
                A(f"buffer_store_dwordx4 v[12:15], v8, s[{SRD_O}:{SRD_O+3}], 0 offen")
                A(f"buffer_store_dwordx4 v[16:19], v8, s[{SRD_O}:{SRD_O+3}], 0 offen offset:16")
                A(f"buffer_store_dwordx4 v[20:23], v8, s[{SRD_O}:{SRD_O+3}], 0 offen offset:32")
        A("s_endpgm")

        A.label(f"L1_slow{sfx}")
        A(f"s_lshl_b32 s52, s{S_W}, 13")
        for ks in range(4): A(f"v_add_u32 v{VKR+ks}, s52, v{VKR+ks}")
        for dt in range(8): A(f"v_add_u32 v{VVR+dt}, s52, v{VVR+dt}")
        def slow_tile(kind):
            srd = SRD_K if kind == "k" else SRD_V
            for a_ in range(2):
                A(f"s_add_u32 s54, s53, {a_*4096}")
                A(f"s_add_u32 m0, s52, {(0 if kind == 'k' else VRING) + a_*4096}")
                A("s_nop 0")
                for b in range(4):
                    vo = VKD + b if kind == "k" else VVD + (b & 1)
                    off = f" offset:{b*1024}" if b else ""
                    A(f"buffer_load_dwordx4 v{vo}, s[{srd}:{srd+3}], s54 offen{off} lds")
        for j in range(nj): A(f"v_mov_b32 v{VT+j}, 0xff800000")
        A("s_mov_b32 s53, 0")
        A.label(f"L1_slow_max{sfx}")
        slow_tile("k")
        A("s_waitcnt vmcnt(0)")
        for x in k_reads(0): A(x)
        A("s_waitcnt lgkmcnt(0)")
        for m in qk_mfmas(0, lambda j: "0"): A(m)
        A("s_nop 7"); A("s_nop 7")
        for j in range(nj):
            for kt in range(2):
                S = SB(0, j, kt)
                A(f"v_max3_f32 v{VT+j}, v{VT+j}, v{S}, v{S+1}")
                A(f"v_max3_f32 v{VT+j}, v{VT+j}, v{S+2}, v{S+3}")
        A("s_add_u32 s53, s53, 8192")
        A("s_cmp_lt_u32 s53, 524288")
        A(f"s_cbranch_scc1 L1_slow_max{sfx}")
        xlane("v_max_f32")
        for j in range(nj):
            A(f"v_sub_f32 v{VT+j}, 0, v{VT+j}")
        for j in range(nj):
            for i_ in range(4): A(f"v_mov_b32 v{NEGM(j)+i_}, v{VT+j}")
        for dt in range(8):
            for j in range(nj):
                for i_ in range(4): A(f"v_accvgpr_write_b32 a{OA(dt,j)+i_}, 0")
        for j in range(nj):
            for i_ in range(4): A(f"v_accvgpr_write_b32 a{LA(j)+i_}, 0")
        A("s_mov_b32 s53, 0")
        A.label(f"L1_slow_main{sfx}")
        slow_tile("k"); slow_tile("v")
        A("s_waitcnt vmcnt(0)")
        for x in k_reads(0): A(x)
        for x in v_reads(0): A(x)
        A("s_waitcnt lgkmcnt(0)")
        for m in qk_mfmas(0, negm): A(m)
        A("s_nop 7"); A("s_nop 7")
        st = softmax_stream(0, nj)
        for k__, x in st:
            if k__ == 'e': A(x)
        A("s_nop 0")
        for k__, x in st:
            if k__ == 'c': A(x)
        A("s_nop 1")
        for m in pv_mfmas(0): A(m)
        A("s_add_u32 s53, s53, 8192")
        A("s_cmp_lt_u32 s53, 524288")
        A(f"s_cbranch_scc1 L1_slow_main{sfx}")
        A("s_nop 7"); A("s_nop 7")
        for j in range(nj): A(f"v_accvgpr_read_b32 v{VT+j}, a{LA(j)}")
        A("s_nop 0")
        A(f"s_branch L1_norm{sfx}")

    body(4, "a")
    A(".p2align 6")
    A.label("L1_w3")
    body(3, "b")
    A.label("L1_done")
    A("s_endpgm")

import re
def fix_trans_hazards(lines):
    out = []
    prev_dst = None
    for ln in lines:
        t = ln.strip()
        if prev_dst is not None and t.startswith("v_") and not t.startswith("v_mfma") :
            ops = t.split(None, 1)[1] if " " in t else ""
            srcs = ops.split(",")[1:]
            hit = False
            for s_ in srcs:
                s_ = s_.strip().split()[0] if s_.strip() else ""
                m = re.fullmatch(r"v(\d+)", s_)
                if m and int(m.group(1)) == prev_dst: hit = True
                m = re.fullmatch(r"v\[(\d+):(\d+)\]", s_)
                if m and int(m.group(1)) <= prev_dst <= int(m.group(2)): hit = True
            if hit and not t.startswith(("v_exp", "v_rcp")): out.append("    s_nop 0")
        prev_dst = None
        m = re.match(r"v_(exp|rcp|log|rsq|sqrt)_f32 v(\d+),", t)
        if m: prev_dst = int(m.group(2))
        out.append(ln)
    return out

def build(opt, k2=None):
    A = Asm()
    A.raw(HEADER.rstrip())
    A.raw(f"; @launch kernel={K1} grid=(256,1,1) block=(256,1,1) lds={LDS_K1}")
    if k2:
        A.raw(f"; @launch kernel={K2} grid=({k2.NWG},1,1) block=(256,1,1) lds={k2.LDS}")
    A.raw('.amdgcn_target "amdgcn-amd-amdhsa--gfx950"')
    gen_k1(A, opt)
    if k2: k2.gen(A, opt)
    kernel_desc(A, K1, 512, 256)
    if k2: kernel_desc(A, K2, k2.VGPR, k2.ACCUM)
    A.lines = fix_trans_hazards(A.lines)
    return A.text()

if __name__ == "__main__":
    import gen_k2, gen_k2b
    open("n2s.s", "w").write(build(dict(stamps=True, qstamps=True), gen_k2b))
    open("n2.s", "w").write(build(dict(), gen_k2b))
    open("n1s.s", "w").write(build(dict(stamps=True, newmap=True), gen_k2))
    open("n1.s", "w").write(build(dict(newmap=True), gen_k2))
    V = {
      "w_a": dict(stamps=True, qstamps=True, newmap=True),
      "w_b": dict(stamps=True, qstamps=True, newmap=True, qdma=4, qdma3=8),
      "w_c": dict(stamps=True, qstamps=True, newmap=True, rot=False),
      "w_d": dict(stamps=True, qstamps=True, newmap=True, qnt="nt"),
      "w_e": dict(stamps=True, qstamps=True, newmap=True, qdma=12, qdma3=16),
    }
    for k_, o_ in V.items(): open(k_ + ".s", "w").write(build(o_, gen_k2))
```

```python
import sys, math, struct, copy
from asmlib import *

K1 = 'attn_kernel'
K2 = 'oproj_kernel'
SCALE = (128 ** -0.5) * math.log2(math.e)
def f2u(x): return struct.unpack("<I", struct.pack("<f", x))[0]

KRING, VRING = 0, 65536
XS = [16384, 49152, 81920]
WS = [114688, 131072, 147456]
LDS_K1 = 163840
SB = lambda e, j, kt: e*32 + (j*2 + kt)*4
PB = lambda e, j: 64 + e*16 + j*4
NEGM = lambda j: 96 + j*4
QACC = lambda T, j: (T*4 + j)*4
QF = lambda j, m: 128 + (j*4 + m)*4
VKR = 192
VVR = 196
VKD = 204
VVD = 208
VXR = 210
VWR = 214
VXD = 218
VWD = 220
VLANE = 221
VT = 222
OA = lambda dt, j: (dt*4 + j)*4
KF = lambda kt, ks: 128 + (kt*4 + ks)*4
VF = lambda dt: 160 + dt*4
LA = lambda j: 192 + j*4
ONES = 208
WF = lambda buf, T: buf*32 + T*4
XF = lambda buf, j: 64 + buf*16 + j*4
S_W = 3
SRD_K, SRD_V, SRD_X, SRD_W, SRD_O = 8, 12, 16, 20, 24
S_KOFF, S_VOFF, S_GRP = 28, 29, 30
S_B, S_H = 32, 33
S_XB, S_WB = 34, 35
S_ROT, S_XO, S_WO = 50, 51, 52

def vr(n, c=4): return f"v[{n}:{n+c-1}]"
def ar(n, c=4): return f"a[{n}:{n+c-1}]"
def mf16(d, a_, b_, c): return f"v_mfma_f32_16x16x32_bf16 {d}, {a_}, {b_}, {c}"

class VmTracker:
    def __init__(self): self.q = []
    def issue(self, tag): self.q.append(tag)
    def need(self, tags):
        last = -1
        for i, t in enumerate(self.q):
            if t in tags: last = i
        if last < 0: return 63
        return min(63, len(self.q) - 1 - last)

class Gaps:
    def __init__(self, mf):
        self.mf = mf
        self.G = len(mf)
        self.sc = [[] for _ in mf]
        self.vec = [[] for _ in mf]
        self.before = [[] for _ in mf]
    def emit(self, A):
        for g, m in enumerate(self.mf):
            for x in self.before[g]: A(x)
            A(m)
            for x in self.sc[g]: A(x)
            for x in self.vec[g]: A(x)

def fill_gaps(gp, estream, dstream, start=0, nslots=2):
    G = gp.G
    ei = di = 0
    last_exp = False
    for g in range(start, G):
        remaining_gaps = G - g
        ne = sum(1 for k, _ in estream[ei:] if k == 'e')
        singles = []
        def d_ok(): return di < len(dstream) and dstream[di][0] <= g
        want_exp = ei < len(estream) and estream[ei][0] == 'e' and (not last_exp or ne >= remaining_gaps or not (d_ok()))
        if want_exp:
            gp.vec[g].append(estream[ei][1]); ei += 1
            last_exp = True
            continue
        last_exp = False
        n = 0
        while n < nslots:
            if ei < len(estream) and estream[ei][0] == 'c':
                gp.vec[g].append(estream[ei][1]); ei += 1; n += 1
            elif d_ok():
                e_, pre_, txt = dstream[di]; di += 1
                gp.sc[g] += pre_
                if pre_ and any("m0" in x for x in pre_) and pre_[-1].find("m0") >= 0:
                    gp.sc[g].append("s_nop 0")
                gp.vec[g].append(txt); n += 1
            else:
                break
    tail = [t for _, t in estream[ei:]]
    dtail = dstream[di:]
    return tail, dtail

def softmax_stream(e, nj):
    st = []
    for j in range(nj):
        for kt in range(2):
            S = SB(e, j, kt)
            for h in range(2):
                st.append(('e', f"v_exp_f32 v{S+2*h}, v{S+2*h}"))
                st.append(('e', f"v_exp_f32 v{S+2*h+1}, v{S+2*h+1}"))
                st.append(('c', f"v_cvt_pk_bf16_f32 v{PB(e, j) + 2*kt + h}, v{S+2*h}, v{S+2*h+1}"))
    return st

def gen_k1(A, opt):
    NT = opt.get("nt", "nt")
    LV = opt.get("lv", 3); LK = LV + 3
    stamps = opt.get("stamps", False)
    QNT = opt.get("qnt", ""); ONT = opt.get("ont", "sc1")
    ROT = opt.get("rot", True)
    kernel_begin(A, K1)
    A("s_cmp_ge_u32 s2, 256")
    A("s_cbranch_scc1 L1_done")
    A("s_load_dwordx8 s[36:43], s[0:1], 0")
    A("s_load_dwordx2 s[44:45], s[0:1], 56")
    if opt.get("dbg"): A("s_load_dwordx2 s[96:97], s[0:1], 48")
    if stamps: A("s_memrealtime s[60:61]")
    L = VLANE
    t0, t1, t2, t3, t4, t5, t6, t7 = [VT + i for i in range(8)]
    A(f"v_and_b32 v{L}, 63, v0")
    A(f"v_lshrrev_b32 v{t0}, 6, v0")
    A("s_and_b32 s46, s2, 7")
    A("s_lshr_b32 s47, s2, 3")
    A(f"v_readfirstlane_b32 s{S_W}, v{t0}")
    A("s_and_b32 s48, s46, 1")
    A("s_lshl_b32 s48, s48, 2")
    A("s_and_b32 s49, s47, 3")
    A(f"s_add_u32 s{S_B}, s48, s49")
    A("s_lshr_b32 s48, s46, 1")
    A("s_lshl_b32 s48, s48, 3")
    A("s_lshr_b32 s53, s47, 2")
    A(f"s_add_u32 s{S_H}, s48, s53")
    A("s_lshl_b32 s49, s49, 1")
    A(f"s_add_u32 s{S_ROT}, s49, s53")
    A(f"s_cmp_ge_u32 s{S_ROT}, 9")
    A("s_cselect_b32 s49, 9, 0")
    A(f"s_sub_u32 s{S_ROT}, s{S_ROT}, s49")
    if not ROT: A(f"s_mov_b32 s{S_ROT}, 0")
    A(f"s_lshl_b32 s{S_XB}, s{S_W}, 13")
    A(f"s_lshl_b32 s{S_WB}, s{S_W}, 12")
    A(f"v_lshrrev_b32 v{t0}, 3, v{L}")
    A(f"s_lshl_b32 s46, s{S_W}, 6")
    A(f"v_add_u32 v{t0}, s46, v{t0}")
    A(f"v_mul_u32_u24 v{t0}, 1152, v{t0}")
    A(f"v_and_b32 v{t1}, 7, v{L}")
    A(f"v_lshrrev_b32 v{t2}, 4, v{L}")
    A(f"v_xor_b32 v{t3}, v{t1}, v{t2}")
    A(f"v_lshl_add_u32 v{VXD}, v{t3}, 4, v{t0}")
    A(f"v_xor_b32 v{t3}, 4, v{t3}")
    A(f"v_lshl_add_u32 v{VXD+1}, v{t3}, 4, v{t0}")
    A(f"v_and_b32 v{t1}, 15, v{L}")
    A(f"v_lshlrev_b32 v{t3}, 2, v{t2}")
    A(f"v_xor_b32 v{t3}, v{t1}, v{t3}")
    A(f"s_lshl_b32 s46, s{S_W}, 4")
    A(f"v_add_u32 v{t4}, s46, v{t2}")
    A(f"v_lshlrev_b32 v{t4}, 13, v{t4}")
    A(f"v_lshl_add_u32 v{VWD}, v{t3}, 4, v{t4}")
    A("s_waitcnt lgkmcnt(0)")
    A(f"s_mul_i32 s46, s{S_B}, 276480")
    A(f"s_add_u32 s{SRD_X}, s36, s46")
    A(f"s_addc_u32 s{SRD_X+1}, s37, 0")
    A(f"s_mov_b32 s{SRD_X+2}, 276480")
    A(f"s_mov_b32 s{SRD_X+3}, 0x20000")
    A(f"s_lshl_b32 s46, s{S_H}, 8")
    A(f"s_add_u32 s{SRD_W}, s42, s46")
    A(f"s_addc_u32 s{SRD_W+1}, s43, 0")
    A(f"s_sub_u32 s{SRD_W+2}, {576*8192}, s46")
    A(f"s_mov_b32 s{SRD_W+3}, 0x20000")

    def rest_of_setup():
        A(f"s_lshl_b32 s46, s{S_B}, 5")
        A(f"s_add_u32 s46, s46, s{S_H}")
        A(f"s_lshl_b32 s46, s46, 19")
        A(f"s_add_u32 s{SRD_K}, s38, s46")
        A(f"s_addc_u32 s{SRD_K+1}, s39, 0")
        A(f"s_mov_b32 s{SRD_K+2}, 524288")
        A(f"s_mov_b32 s{SRD_K+3}, 0x20000")
        A(f"s_add_u32 s{SRD_V}, s40, s46")
        A(f"s_addc_u32 s{SRD_V+1}, s41, 0")
        A(f"s_mov_b32 s{SRD_V+2}, 524288")
        A(f"s_mov_b32 s{SRD_V+3}, 0x20000")
        A(f"s_mov_b32 s{SRD_O}, s44")
        A(f"s_mov_b32 s{SRD_O+1}, s45")
        A(f"s_mov_b32 s{SRD_O+2}, 0x2000000")
        A(f"s_mov_b32 s{SRD_O+3}, 0x20000")
        A(f"v_and_b32 v{t0}, 15, v{L}")
        A(f"v_lshrrev_b32 v{t1}, 4, v{L}")
        A(f"v_bfe_u32 v{t2}, v{L}, 2, 2")
        A(f"v_and_b32 v{t3}, 3, v{L}")
        for ks in range(4):
            A(f"v_add_u32 v{t4}, {4*ks}, v{t1}")
            A(f"v_xor_b32 v{t4}, v{t4}, v{t0}")
            A(f"v_lshlrev_b32 v{t4}, 4, v{t4}")
            A(f"v_lshl_add_u32 v{VKR+ks}, v{t0}, 8, v{t4}")
        A(f"v_lshl_add_u32 v{t5}, v{t1}, 2, v{t2}")
        A(f"v_and_b32 v{t6}, 7, v{t5}")
        A(f"v_lshrrev_b32 v{t7}, 1, v{t3}")
        A(f"v_and_b32 v{VT+8}, 1, v{t3}")
        A(f"v_lshlrev_b32 v{VT+8}, 3, v{VT+8}")
        A(f"v_lshl_add_u32 v{VT+8}, v{t5}, 8, v{VT+8}")
        A(f"v_add_u32 v{VT+8}, {VRING}, v{VT+8}")
        for dt in range(8):
            A(f"v_xor_b32 v{t4}, {dt}, v{t6}")
            A(f"v_lshl_add_u32 v{t4}, v{t4}, 1, v{t7}")
            A(f"v_lshl_add_u32 v{VVR+dt}, v{t4}, 4, v{VT+8}")
        A(f"v_bfe_u32 v{t5}, v{t0}, 1, 3")
        A(f"v_lshlrev_b32 v{t6}, 7, v{t0}")
        A(f"v_add_u32 v{t6}, s{S_XB}, v{t6}")
        for s_ in range(2):
            A(f"v_add_u32 v{t4}, {4*s_}, v{t1}")
            A(f"v_xor_b32 v{t4}, v{t4}, v{t5}")
            A(f"v_lshl_add_u32 v{VXR+s_}, v{t4}, 4, v{t6}")
            A(f"v_add_u32 v{VXR+2+s_}, 65536, v{VXR+s_}")
        A(f"v_lshl_add_u32 v{t5}, v{t1}, 3, v{t2}")
        A(f"v_lshlrev_b32 v{t5}, 8, v{t5}")
        A(f"v_add_u32 v{t5}, {WS[0]}, v{t5}")
        for m in range(4):
            A(f"v_xor_b32 v{t4}, {m}, v{t2}")
            A(f"v_lshl_add_u32 v{t4}, v{t4}, 2, v{t3}")
            A(f"v_lshl_add_u32 v{VWR+m}, v{t4}, 4, v{t5}")
        for b in range(4):
            A(f"v_add_u32 v{t4}, {4*b}, v{t1}")
            A(f"v_xor_b32 v{t4}, v{t4}, v{t0}")
            A(f"v_lshlrev_b32 v{t4}, 4, v{t4}")
            A(f"v_lshl_add_u32 v{VKD+b}, v{t1}, 8, v{t4}")
        for b in range(2):
            A(f"v_add_u32 v{t4}, {4*b}, v{t1}")
            A(f"v_lshlrev_b32 v{t4}, 1, v{t4}")
            A(f"v_xor_b32 v{t4}, v{t4}, v{t0}")
            A(f"v_lshlrev_b32 v{t4}, 4, v{t4}")
            A(f"v_lshl_add_u32 v{VVD+b}, v{t1}, 8, v{t4}")

    def dma_chunk(c, nj):
        st = c % 3
        ops = []
        first = [f"s_lshl_b32 s{S_XO}, s{S_ROT}, 7", f"s_lshl_b32 s{S_WO}, s{S_ROT}, 19"]
        for p in range(2*nj):
            ops.append(((first if p == 0 else []) + [f"s_add_u32 m0, s{S_XB}, {XS[st] + p*1024}", f"s_add_u32 s46, s{S_XO}, {p*9216}"],
                        f"buffer_load_dwordx4 v{VXD + (p & 1)}, s[{SRD_X}:{SRD_X+3}], s46 offen {QNT} lds", ("c", c)))
        for p in range(4):
            adv = [f"s_add_u32 s{S_ROT}, s{S_ROT}, 1", f"s_cmp_eq_u32 s{S_ROT}, 9", f"s_cselect_b32 s{S_ROT}, 0, s{S_ROT}"] if p == 0 else []
            ops.append((adv + [f"s_add_u32 m0, s{S_WB}, {WS[st] + p*1024}", f"s_add_u32 s46, s{S_WO}, {p*32768}"],
                        f"buffer_load_dwordx4 v{VWD}, s[{SRD_W}:{SRD_W+3}], s46 offen {QNT} lds", ("c", c)))
        return ops
    def dma_tile(kind, t, dyn, ldsbase=None):
        srd = SRD_K if kind == "k" else SRD_V
        base = ((KRING if kind == "k" else VRING) + (t % 8)*8192) if ldsbase is None else ldsbase
        ops = []
        for a_ in range(2):
            for b in range(4):
                pre = []
                if b == 0:
                    if dyn is None: pre = [f"s_mov_b32 s47, {t*8192 + a_*4096}"]
                    elif a_ == 0: pre = [f"s_add_u32 {dyn}, {dyn}, 8192", f"s_mov_b32 s47, {dyn}"]
                    else: pre = [f"s_add_u32 s47, {dyn}, 4096"]
                    if isinstance(base, str): pre.append(f"s_add_u32 m0, {base}, {(0 if kind == 'k' else VRING) + a_*4096}")
                    else: pre.append(f"s_mov_b32 m0, {base + a_*4096}")
                vo = VKD + b if kind == "k" else VVD + (b & 1)
                off = f" offset:{b*1024}" if b else ""
                ops.append((pre, f"buffer_load_dwordx4 v{vo}, s[{srd}:{srd+3}], s47 offen{off} {NT} lds", (kind, t)))
        return ops

    def emit_dma(vm, ops):
        for pre_, ld, tag in ops:
            for x in pre_: A(x)
            if pre_ and "m0" in pre_[-1]: A("s_nop 0")
            A(ld); vm.issue(tag)

    A(f"s_cmp_eq_u32 s{S_W}, 3")
    A("s_cbranch_scc1 L1_w3")

    def body(nj, sfx):
        loader = (nj == 3)
        vm = VmTracker()
        emit_dma(vm, dma_chunk(0, nj))
        rest_of_setup()
        if not loader:
            A(f"s_cmp_lg_u32 s{S_W}, 0")
            A(f"s_cbranch_scc1 L1_noflag")
            A("s_lshl_b32 s46, s2, 7")
            A("s_add_u32 s46, s46, 0x1080000")
            A(f"v_mov_b32 v{VT}, 0")
            A(f"v_cmp_eq_u32 vcc, 0, v{L}")
            A("s_and_saveexec_b64 s[48:49], vcc")
            A(f"buffer_store_dword v{VT}, v{VT}, s[{SRD_O}:{SRD_O+3}], s46 offen")
            A("s_mov_b64 exec, s[48:49]")
            A("s_waitcnt vmcnt(0)") if False else None
            A.label("L1_noflag")
        emit_dma(vm, dma_chunk(1, nj))

        def rd_step(n):
            c, s_ = n // 2, n % 2
            st, buf = c % 3, n & 1
            xs = []
            for j in range(nj):
                off = XS[st] + j*2048
                reg = VXR + s_
                if off >= 65536: off -= 65536; reg += 2
                xs.append(f"ds_read_b128 {ar(XF(buf, j))}, v{reg} offset:{off}")
            ws = []
            for T in range(8):
                for t in range(2):
                    r = WF(buf, T) + 2*t
                    ws.append(f"ds_read_b64_tr_b16 a[{r}:{r+1}], v{VWR + (T >> 1)} offset:{(WS[st]-WS[0]) + s_*8192 + t*1024 + 8*(T & 1)}")
            return [xs[0]] + ws[0:2] + xs[1:] + ws[2:]
        A(f"s_waitcnt vmcnt({vm.need({('c',0)})})")
        A("s_barrier")
        if stamps and not loader: A("s_memrealtime s[62:63]")
        for x in rd_step(0): A(x)
        pend = [(0, op) for op in dma_chunk(2, nj)]
        if loader:
            pend += [(0, op) for op in dma_tile("k", 0, None)] + [(0, op) for op in dma_tile("k", 1, None)]
        def k_reads(t):
            return [f"ds_read_b128 {ar(KF(kt, ks))}, v{VKR+ks} offset:{KRING + (t % 8)*8192 + kt*4096}" for kt in range(2) for ks in range(4)]
        def v_reads(t):
            return [f"ds_read_b64_tr_b16 a[{VF(dt)+2*tt}:{VF(dt)+2*tt+1}], v{VVR+dt} offset:{(t % 8)*8192 + tt*4096}" for dt in range(8) for tt in range(2)]
        NSTEP = 18
        for n in range(NSTEP):
            c, s_ = n // 2, n % 2
            buf = n & 1
            mf = []
            for T in range(8):
                for j in range(nj):
                    d = QACC(T, j)
                    mf.append(mf16(vr(d), ar(WF(buf, T)), ar(XF(buf, j)), "0" if n == 0 else vr(d)))
            gp = Gaps(mf)
            gp.before[0].append("s_waitcnt lgkmcnt(0)")
            ds = []
            if s_ == 1:
                if c + 1 <= 8: gp.before[0].append(f"s_waitcnt vmcnt({vm.need({('c', c+1)})})")
                elif loader: gp.before[0].append(f"s_waitcnt vmcnt({vm.need({('k', 0), ('k', 1)})})")
                if opt.get("qstamps") and not loader: gp.before[0].append(f"s_memtime s[{74+2*c}:{75+2*c}]") if False else None
                gp.before[0].append("s_barrier")
                if opt.get("qstamps") and not loader: gp.before[0].append(f"s_memtime s[{74+2*c}:{75+2*c}]")
                if c + 3 <= 8: pend += [(n, op) for op in dma_chunk(c + 3, nj)]
                if loader:
                    if c == 6: pend += [(n, op) for t in range(2, 6) for op in dma_tile("k", t, None)]
                    if c == 7: pend += [(n, op) for t in (6, 7) for op in dma_tile("k", t, None)] + [(n, op) for t in (0, 1) for op in dma_tile("v", t, None)]
                    if c == 8: pend += [(n, op) for t in range(2, LV) for op in dma_tile("v", t, None)]
            if n + 1 < NSTEP: rd = rd_step(n + 1)
            else: rd = k_reads(0)
            for x in rd: ds.append((0, [], x))
            G = gp.G
            span = G - opt.get("qrd_margin", 6)
            for i_, (_, _, x) in enumerate(ds): gp.vec[(i_ * span) // len(ds)].append(x)
            maxd = opt.get("qdma", 6) if not loader else opt.get("qdma3", 10)
            k_ = 0
            while pend and k_ < maxd and pend[0][0] <= n:
                _, (pre_, ld, tag) = pend.pop(0)
                g = 1 + (k_ * (G - 1)) // maxd
                gp.sc[g] += pre_
                if pre_ and "m0" in pre_[-1]: gp.sc[g].append("s_nop 0")
                gp.vec[g].append(ld); vm.issue(tag)
                k_ += 1
            gp.emit(A)
        if stamps and not loader: A("s_memrealtime s[64:65]")
        emit_dma(vm, [op for _, op in pend]); pend = []
        A(f"s_mov_b32 s46, {hex(f2u(SCALE))}")
        A("s_mov_b32 s47, s46")
        A("s_nop 4")
        for m in range(4):
            for j in range(nj):
                for e_ in range(2):
                    d = QACC(2*m + e_, j)
                    A(f"v_pk_mul_f32 v[{d}:{d+1}], v[{d}:{d+1}], s[46:47]")
                    A(f"v_pk_mul_f32 v[{d+2}:{d+3}], v[{d+2}:{d+3}], s[46:47]")
                for e_ in range(2):
                    d = QACC(2*m + e_, j)
                    A(f"v_cvt_pk_bf16_f32 v{QF(j, m) + 2*e_}, v{d}, v{d+1}")
                    A(f"v_cvt_pk_bf16_f32 v{QF(j, m) + 2*e_ + 1}, v{d+2}, v{d+3}")
        def qk_mfmas(e, first_c):
            mf = []
            for kt in range(2):
                for j in range(nj):
                    d = SB(e, j, kt)
                    for ks in range(4):
                        mf.append(mf16(vr(d), ar(KF(kt, ks)), vr(QF(j, ks)), first_c(j) if ks == 0 else vr(d)))
            return mf
        def pv_mfmas(e, zero_c=False):
            mf = []
            for dt in range(8):
                for j in range(nj):
                    o = OA(dt, j)
                    mf.append(mf16(ar(o), ar(VF(dt)), vr(PB(e, j)), "0" if zero_c else ar(o)))
                if dt % 2 == 1 and dt // 2 < nj:
                    j = dt // 2
                    mf.append(mf16(ar(LA(j)), ar(ONES), vr(PB(e, j)), "0" if zero_c else ar(LA(j))))
            return mf
        A("s_waitcnt lgkmcnt(0)")
        A(f"v_mov_b32 v{VT}, 0x3f803f80")
        mf = qk_mfmas(0, lambda j: "0")
        gp = Gaps(mf)
        k1r = k_reads(1)
        half = len(mf) // 2
        for i_ in range(4): gp.vec[half + i_].append(k1r[i_])
        for i_ in range(4): gp.vec[i_].append(f"v_accvgpr_write_b32 a{ONES+i_}, v{VT}")
        gp.emit(A)
        for i_ in range(4): A(k1r[4 + i_])
        A("s_nop 3")
        for j in range(nj):
            a0, a1 = SB(0, j, 0), SB(0, j, 1)
            m_ = VT + j
            A(f"v_max3_f32 v{m_}, v{a0}, v{a0+1}, v{a0+2}")
            A(f"v_max3_f32 v{m_}, v{m_}, v{a0+3}, v{a1}")
            A(f"v_max3_f32 v{m_}, v{m_}, v{a1+1}, v{a1+2}")
            A(f"v_max_f32 v{m_}, v{m_}, v{a1+3}")
        def xlane(op):
            for swp in ("v_permlane16_swap_b32", "v_permlane32_swap_b32"):
                for j in range(nj): A(f"v_mov_b32 v{VT+4+j}, v{VT+j}")
                A("s_nop 1")
                for j in range(nj): A(f"{swp} v{VT+j}, v{VT+4+j}")
                A("s_nop 1")
                for j in range(nj): A(f"{op} v{VT+j}, v{VT+j}, v{VT+4+j}")
        xlane("v_max_f32")
        for j in range(nj):
            A(f"v_sub_f32 v{VT+j}, 0, v{VT+j}")
        for j in range(nj):
            for i_ in range(4): A(f"v_mov_b32 v{NEGM(j)+i_}, v{VT+j}")
            for kt in range(2):
                for i_ in range(4): A(f"v_add_f32 v{SB(0,j,kt)+i_}, v{SB(0,j,kt)+i_}, v{VT+j}")
        if loader:
            A(f"s_mov_b32 s{S_KOFF}, {7*8192}")
            A(f"s_mov_b32 s{S_VOFF}, {(LV-1)*8192}")
            A(f"s_waitcnt vmcnt({vm.need({('k', 2)})}) lgkmcnt(0)")
        else:
            A("s_waitcnt lgkmcnt(0)")
        A("s_barrier")
        if stamps and not loader: A("s_memrealtime s[66:67]")
        negm = lambda j: vr(NEGM(j))

        def iteration(i, do_qk=True, do_pv=True, zero_c=False, extra_dma=None):
            e = i & 1
            mf = []
            if do_qk: mf += qk_mfmas(e ^ 1, negm)
            nq = len(mf)
            if do_pv: mf += pv_mfmas(e ^ 1, zero_c)
            gp = Gaps(mf)
            est = softmax_stream(e, nj)
            dst = []
            if do_pv and do_qk:
                for x in v_reads(i - 1): dst.append((0, [], x))
            if do_qk:
                kr = k_reads(i + 2)
                for i_ in range(4): dst.append((nq // 2, [], kr[i_]))
                for i_ in range(4): dst.append((nq, [], kr[4 + i_]))
            if loader and do_qk:
                ops = (extra_dma or []) + dma_tile("v", i + LV, f"s{S_VOFF}") + (dma_tile("k", i + LK, f"s{S_KOFF}") if i + LK >= 8 else [])
                merged = []
                nd = len(dst)
                step = max(1, nd) / max(1, len(ops))
                oi = 0
                for k_, d_ in enumerate(dst):
                    merged.append(d_)
                    while oi < len(ops) and (oi + 1) * step <= k_ + 1:
                        merged.append((d_[0], ops[oi][0], ops[oi][1])); vm.issue(ops[oi][2]); oi += 1
                while oi < len(ops):
                    merged.append((0, ops[oi][0], ops[oi][1])); vm.issue(ops[oi][2]); oi += 1
                dst = merged
            if not do_pv:
                nslots = 3
            else:
                nslots = 3 if loader else 2
            tail, dtail = fill_gaps(gp, est, dst, nslots=nslots)
            if do_pv and do_qk:
                order = [x for g in range(nq) for x in gp.vec[g] if x.startswith("ds_")]
                nv = sum(1 for x in order if "tr_b16" in x)
                if nv == 16:
                    after = len(order) - 1 - max(k for k, x in enumerate(order) if "tr_b16" in x)
                    gp.sc[nq - 1].append(f"s_waitcnt lgkmcnt({after})")
                else:
                    allorder = [(g, x) for g in range(gp.G) for x in gp.vec[g] if x.startswith("ds_")]
                    vpos = [k for k, (g, x) in enumerate(allorder) if "tr_b16" in x]
                    per = nj
                    g = nq
                    for dt in range(8):
                        gm = next(k for k, m in enumerate(mf) if k >= nq and ar(VF(dt)) in m)
                        need_pos = vpos[2*dt + 1]
                        assert allorder[need_pos][0] < gm, (i, dt, allorder[need_pos][0], gm)
                        issued = sum(1 for (gg, x) in allorder if gg < gm)
                        gp.sc[gm - 1].append(f"s_waitcnt lgkmcnt({min(15, issued - 1 - need_pos)})")
            gp.emit(A)
            if tail: A("s_nop 0")
            for x in tail: A(x)
            for e_, pre_, txt in dtail:
                for x in pre_: A(x)
                if pre_ and "m0" in pre_[-1]: A("s_nop 0")
                A(txt)
        def end_wait(i):
            if not loader: return "s_waitcnt lgkmcnt(0)"
            tags = {("v", i)}
            if i + 3 <= 63: tags.add(("k", i + 3))
            return vm.need(tags)
        extra = None
        if loader and LK > 8:
            extra = []
            for t in range(8, LK): extra += dma_tile("k", t, f"s{S_KOFF}")
        iteration(0, do_pv=False, extra_dma=extra)
        w = end_wait(0)
        A(f"s_waitcnt vmcnt({w}) lgkmcnt(0)" if loader else w)
        A("s_barrier")
        iteration(1, zero_c=True)
        w = end_wait(1)
        A(f"s_waitcnt vmcnt({w}) lgkmcnt(0)" if loader else w)
        A("s_barrier")
        A(f"s_mov_b32 s{S_GRP}, 0")
        A(f"s_branch L1_pos2{sfx}")
        npos = {}
        if loader:
            save_q, save_lines = list(vm.q), A.lines
            A.lines = []
            ns = {}
            for i in range(2, 63):
                iteration(i); ns[i] = end_wait(i)
            A.lines = save_lines
            npos = {p: min(ns[i] for i in range(2, 63) if i % 8 == p) for p in range(8)}
            vm.q = save_q
        A(".p2align 6")
        for p in range(8):
            A.label(f"L1_pos{p}{sfx}")
            iteration(8 + p)
            A(f"s_waitcnt vmcnt({npos[p]}) lgkmcnt(0)" if loader else "s_waitcnt lgkmcnt(0)")
            if p == 6:
                A(f"s_cmp_eq_u32 s{S_GRP}, 7")
                A("s_barrier")
                A(f"s_cbranch_scc1 L1_tail{sfx}")
            elif p == 7:
                A(f"s_add_u32 s{S_GRP}, s{S_GRP}, 1")
                A("s_barrier")
                A(f"s_branch L1_pos0{sfx}")
            else:
                A("s_barrier")
        A.label(f"L1_tail{sfx}")
        if stamps and not loader: A("s_memrealtime s[68:69]")
        e = 1
        for x in v_reads(62): A(x)
        mf = pv_mfmas(e ^ 1)
        gp = Gaps(mf)
        est = softmax_stream(e, nj)
        gp.before[0].append("s_waitcnt lgkmcnt(0)")
        if loader: gp.before[0].append("s_waitcnt vmcnt(0)")
        gp.before[0].append("s_barrier")
        vr63 = v_reads(63)
        dst = []
        for dt in range(8):
            gm = max(k for k, m in enumerate(mf) if ar(VF(dt)) in m)
            dst += [(gm + 1 if gm + 1 < len(mf) else gm, [], x) for x in vr63[2*dt:2*dt+2]]
        tail, dtail = fill_gaps(gp, est, dst, nslots=3)
        gp.emit(A)
        if tail: A("s_nop 0")
        for x in tail: A(x)
        for e_, pre_, txt in dtail: A(txt)
        A("s_waitcnt lgkmcnt(0)")
        A("s_barrier")
        for m in pv_mfmas(e): A(m)
        A("s_nop 7")
        for j in range(nj): A(f"v_accvgpr_read_b32 v{VT+j}, a{LA(j)}")
        A(f"s_mov_b32 s47, {hex(f2u(2.0**40))}")
        A("s_mov_b64 s[48:49], 0")
        for j in range(nj):
            A(f"v_cmp_ngt_f32 vcc, s47, v{VT+j}")
            A("s_nop 3")
            A("s_or_b64 s[48:49], s[48:49], vcc")
        A("s_cmp_eq_u64 s[48:49], 0")
        A(f"s_cbranch_scc0 L1_slow{sfx}")
        A.label(f"L1_norm{sfx}")
        for j in range(nj): A(f"v_rcp_f32 v{VT+4+j}, v{VT+j}")
        A(f"s_mul_i32 s46, s{S_B}, 15")
        A(f"s_lshl_b32 s47, s{S_W}, 2")
        A("s_add_u32 s46, s46, s47")
        A("s_lshl_b32 s46, s46, 17")
        A(f"s_lshl_b32 s47, s{S_H}, 12")
        A("s_add_u32 s46, s46, s47")
        A(f"v_lshlrev_b32 v{VT+8}, 4, v{L}")
        k_ = 0
        for j in range(nj):
            A(f"s_add_u32 s47, s46, {j*131072}")
            for m in range(4):
                base = (k_ % 6) * 12; k_ += 1
                for e_ in range(2):
                    o = OA(2*m + e_, j)
                    for i_ in range(4): A(f"v_accvgpr_read_b32 v{base+4*e_+i_}, a{o+i_}")
                for i_ in range(0, 8, 2):
                    A(f"v_pk_mul_f32 v[{base+i_}:{base+i_+1}], v[{base+i_}:{base+i_+1}], v[{VT+4+j-((VT+4+j)%2)}:{VT+5+j-((VT+4+j)%2)}] op_sel:[0,{(VT+4+j)%2}] op_sel_hi:[1,{(VT+4+j)%2}]")
                for i_ in range(4):
                    A(f"v_cvt_pk_bf16_f32 v{base+8+i_}, v{base+2*i_}, v{base+2*i_+1}")
                A(f"buffer_store_dwordx4 v[{base+8}:{base+11}], v{VT+8}, s[{SRD_O}:{SRD_O+3}], s47 offen offset:{m*1024} {ONT}")
        if stamps and not loader:
            A("s_memrealtime s[70:71]")
            A("s_waitcnt lgkmcnt(0) vmcnt(0)")
            A("s_memrealtime s[72:73]")
            A("s_waitcnt lgkmcnt(0)")
            A(f"s_cmp_lg_u32 s{S_W}, 0")
            A("s_cbranch_scc1 L1_done")
            if opt.get("dbg"):
                A("s_mov_b32 s92, s96"); A("s_and_b32 s93, s97, 0xffff"); A("s_mov_b32 s94, 256"); A("s_mov_b32 s95, 0x20000")
                A(f"v_cmp_eq_u32 vcc, 0, v{L}")
                A("s_and_saveexec_b64 s[48:49], vcc")
                for i_, r in enumerate([62, 64, 66, 68, 70, 72]):
                    A(f"s_sub_u32 s46, s{r}, s60")
                    A("v_mov_b32 v0, s46")
                    A(f"v_mov_b32 v1, {4*i_}")
                    A("buffer_atomic_umax v0, v1, s[92:95], 0 offen")
                    A(f"v_mov_b32 v1, {32+4*i_}")
                    A("buffer_atomic_add v0, v1, s[92:95], 0 offen")
                    A("s_waitcnt vmcnt(0)")
                A("s_mov_b64 exec, s[48:49]")
                A("s_branch L1_done")
            A(f"s_mov_b32 s{SRD_O+2}, 0x20000000")
            for i_, r in enumerate([60, 62, 64, 66, 68, 70, 72]):
                A(f"v_mov_b32 v{i_}, s{r}")
            A("v_mov_b32 v7, s61")
            A("s_lshl_b32 s46, s2, 5")
            A("s_add_u32 s46, s46, 0x1000000")
            A("v_mov_b32 v8, s46")
            A(f"v_cmp_eq_u32 vcc, 0, v{L}")
            A("s_and_saveexec_b64 s[48:49], vcc")
            A("s_cbranch_execz L1_done")
            A(f"buffer_store_dwordx4 v[0:3], v8, s[{SRD_O}:{SRD_O+3}], 0 offen")
            A(f"buffer_store_dwordx4 v[4:7], v8, s[{SRD_O}:{SRD_O+3}], 0 offen offset:16")
            if opt.get("qstamps"):
                for i_ in range(9): A(f"v_mov_b32 v{12+i_}, s{74+2*i_}")
                A("s_lshl_b32 s46, s2, 6")
                A("s_add_u32 s46, s46, 0x1020000")
                A("v_mov_b32 v8, s46")
                A(f"buffer_store_dwordx4 v[12:15], v8, s[{SRD_O}:{SRD_O+3}], 0 offen")
                A(f"buffer_store_dwordx4 v[16:19], v8, s[{SRD_O}:{SRD_O+3}], 0 offen offset:16")
                A(f"buffer_store_dwordx4 v[20:23], v8, s[{SRD_O}:{SRD_O+3}], 0 offen offset:32")
        A("s_endpgm")

        A.label(f"L1_slow{sfx}")
        A(f"s_lshl_b32 s52, s{S_W}, 13")
        for ks in range(4): A(f"v_add_u32 v{VKR+ks}, s52, v{VKR+ks}")
        for dt in range(8): A(f"v_add_u32 v{VVR+dt}, s52, v{VVR+dt}")
        def slow_tile(kind):
            srd = SRD_K if kind == "k" else SRD_V
            for a_ in range(2):
                A(f"s_add_u32 s54, s53, {a_*4096}")
                A(f"s_add_u32 m0, s52, {(0 if kind == 'k' else VRING) + a_*4096}")
                A("s_nop 0")
                for b in range(4):
                    vo = VKD + b if kind == "k" else VVD + (b & 1)
                    off = f" offset:{b*1024}" if b else ""
                    A(f"buffer_load_dwordx4 v{vo}, s[{srd}:{srd+3}], s54 offen{off} lds")
        for j in range(nj): A(f"v_mov_b32 v{VT+j}, 0xff800000")
        A("s_mov_b32 s53, 0")
        A.label(f"L1_slow_max{sfx}")
        slow_tile("k")
        A("s_waitcnt vmcnt(0)")
        for x in k_reads(0): A(x)
        A("s_waitcnt lgkmcnt(0)")
        for m in qk_mfmas(0, lambda j: "0"): A(m)
        A("s_nop 7"); A("s_nop 7")
        for j in range(nj):
            for kt in range(2):
                S = SB(0, j, kt)
                A(f"v_max3_f32 v{VT+j}, v{VT+j}, v{S}, v{S+1}")
                A(f"v_max3_f32 v{VT+j}, v{VT+j}, v{S+2}, v{S+3}")
        A("s_add_u32 s53, s53, 8192")
        A("s_cmp_lt_u32 s53, 524288")
        A(f"s_cbranch_scc1 L1_slow_max{sfx}")
        xlane("v_max_f32")
        for j in range(nj):
            A(f"v_sub_f32 v{VT+j}, 0, v{VT+j}")
        for j in range(nj):
            for i_ in range(4): A(f"v_mov_b32 v{NEGM(j)+i_}, v{VT+j}")
        for dt in range(8):
            for j in range(nj):
                for i_ in range(4): A(f"v_accvgpr_write_b32 a{OA(dt,j)+i_}, 0")
        for j in range(nj):
            for i_ in range(4): A(f"v_accvgpr_write_b32 a{LA(j)+i_}, 0")
        A("s_mov_b32 s53, 0")
        A.label(f"L1_slow_main{sfx}")
        slow_tile("k"); slow_tile("v")
        A("s_waitcnt vmcnt(0)")
        for x in k_reads(0): A(x)
        for x in v_reads(0): A(x)
        A("s_waitcnt lgkmcnt(0)")
        for m in qk_mfmas(0, negm): A(m)
        A("s_nop 7"); A("s_nop 7")
        st = softmax_stream(0, nj)
        for k__, x in st:
            if k__ == 'e': A(x)
        A("s_nop 0")
        for k__, x in st:
            if k__ == 'c': A(x)
        A("s_nop 1")
        for m in pv_mfmas(0): A(m)
        A("s_add_u32 s53, s53, 8192")
        A("s_cmp_lt_u32 s53, 524288")
        A(f"s_cbranch_scc1 L1_slow_main{sfx}")
        A("s_nop 7"); A("s_nop 7")
        for j in range(nj): A(f"v_accvgpr_read_b32 v{VT+j}, a{LA(j)}")
        A("s_nop 0")
        A(f"s_branch L1_norm{sfx}")

    body(4, "a")
    A(".p2align 6")
    A.label("L1_w3")
    body(3, "b")
    A.label("L1_done")
    A("s_endpgm")

import re
def fix_trans_hazards(lines):
    out = []
    prev_dst = None
    for ln in lines:
        t = ln.strip()
        if prev_dst is not None and t.startswith("v_") and not t.startswith("v_mfma") :
            ops = t.split(None, 1)[1] if " " in t else ""
            srcs = ops.split(",")[1:]
            hit = False
            for s_ in srcs:
                s_ = s_.strip().split()[0] if s_.strip() else ""
                m = re.fullmatch(r"v(\d+)", s_)
                if m and int(m.group(1)) == prev_dst: hit = True
                m = re.fullmatch(r"v\[(\d+):(\d+)\]", s_)
                if m and int(m.group(1)) <= prev_dst <= int(m.group(2)): hit = True
            if hit and not t.startswith(("v_exp", "v_rcp")): out.append("    s_nop 0")
        prev_dst = None
        m = re.match(r"v_(exp|rcp|log|rsq|sqrt)_f32 v(\d+),", t)
        if m: prev_dst = int(m.group(2))
        out.append(ln)
    return out

def build(opt, k2=None):
    A = Asm()
    A.raw(HEADER.rstrip())
    A.raw(f"; @launch kernel={K1} grid=(256,1,1) block=(256,1,1) lds={LDS_K1}")
    if k2:
        A.raw(f"; @launch kernel={K2} grid=({k2.NWG},1,1) block=(256,1,1) lds={k2.LDS}")
    A.raw('.amdgcn_target "amdgcn-amd-amdhsa--gfx950"')
    gen_k1(A, opt)
    if k2: k2.gen(A, opt)
    kernel_desc(A, K1, 512, 256)
    if k2: kernel_desc(A, K2, k2.VGPR, k2.ACCUM)
    A.lines = fix_trans_hazards(A.lines)
    return A.text()

if __name__ == "__main__":
    import gen_k2, gen_k2b
    open("n2s.s", "w").write(build(dict(stamps=True, qstamps=True), gen_k2b))
    open("n2.s", "w").write(build(dict(), gen_k2b))
    open("n2spin100.s", "w").write(build(dict(stamps=True, dbg2=True, spin=10000), gen_k2b))
    open("n2spin120.s", "w").write(build(dict(stamps=True, dbg2=True, spin=12000), gen_k2b))
    open("n2d.s", "w").write(build(dict(stamps=True, dbg2=True), gen_k2b))
    open("n1s.s", "w").write(build(dict(stamps=True, newmap=True), gen_k2))
    open("n1.s", "w").write(build(dict(newmap=True), gen_k2))
    V = {
      "w_a": dict(stamps=True, qstamps=True, newmap=True),
      "w_b": dict(stamps=True, qstamps=True, newmap=True, qdma=4, qdma3=8),
      "w_c": dict(stamps=True, qstamps=True, newmap=True, rot=False),
      "w_d": dict(stamps=True, qstamps=True, newmap=True, qnt="nt"),
      "w_e": dict(stamps=True, qstamps=True, newmap=True, qdma=12, qdma3=16),
    }
    for k_, o_ in V.items(): open(k_ + ".s", "w").write(build(o_, gen_k2))
```

```python
from asmlib import *
import re
K2 = 'oproj_kernel'
LDS = 49152
VGPR = 256
ACCUM = 128
NWG = 240
FLAGS_OFF = 0x1080000
PART_OFF = 0x1200000
VLANE = 0
VBO = 1
VWD = 2
VAR = 5
VT = 8
BF = lambda slot, s, mt: 32 + slot*24 + (s*3 + mt)*4
AF = lambda buf, nt: buf*24 + nt*4
ACC = lambda mt, nt: 48 + (mt*6 + nt)*4
SRD_O, SRD_WO, SRD_OUT, SRD_P = 8, 12, 16, 20
S_KQ, S_NT, S_ROW0, S_GRP, S_C = 32, 33, 34, 35, 30
def vr(n, c=4): return f"v[{n}:{n+c-1}]"
def ar(n, c=4): return f"a[{n}:{n+c-1}]"

def gen(A, opt):
    NT = opt.get("k2nt", "")
    stamps = opt.get("stamps", False)
    kernel_begin(A, K2)
    A(f"s_cmp_ge_u32 s2, {NWG}")
    A("s_cbranch_scc1 L2_done")
    A("s_load_dwordx4 s[36:39], s[0:1], 32")
    A("s_load_dwordx2 s[40:41], s[0:1], 56")
    if stamps: A("s_memrealtime s[60:61]")
    t0, t1, t2, t3, t4, t5 = [VT + i for i in range(6)]
    L = VLANE
    A(f"v_lshrrev_b32 v{t0}, 6, v0")
    A(f"v_and_b32 v{L}, 63, v0")
    A("s_and_b32 s46, s2, 7")
    A("s_lshr_b32 s47, s2, 3")
    A(f"v_readfirstlane_b32 s3, v{t0}")
    A("s_mul_i32 s48, s47, 43")
    A("s_lshr_b32 s48, s48, 8")
    A("s_mul_i32 s49, s48, 6")
    A(f"s_sub_u32 s{S_NT}, s47, s49")
    A(f"s_lshr_b32 s{S_KQ}, s46, 1")
    A("s_and_b32 s46, s46, 1")
    A("s_mul_i32 s49, s46, 5")
    A("s_add_u32 s49, s49, s48")
    A(f"s_mul_i32 s{S_GRP}, s49, 6")
    A(f"s_add_u32 s{S_GRP}, s{S_GRP}, s{S_NT}")
    A(f"s_mul_i32 s{S_ROW0}, s49, 12")
    A(f"s_add_u32 s{S_C}, s{S_NT}, s48")
    A(f"s_mul_i32 s{S_C}, s{S_C}, 3")
    A(f"s_and_b32 s{S_C}, s{S_C}, 15")
    if not opt.get("k2rot", True): A(f"s_mov_b32 s{S_C}, 0")
    A(f"v_lshlrev_b32 v{VBO}, 4, v{L}")
    A("s_mul_i32 s46, s3, 192")
    A("s_mov_b32 s47, 43691")
    for i in range(3):
        A(f"v_add_u32 v{t0}, s46, v{L}")
        if i: A(f"v_add_u32 v{t0}, {64*i}, v{t0}")
        A(f"v_mul_lo_u32 v{t1}, v{t0}, s47")
        A(f"v_lshrrev_b32 v{t1}, 19, v{t1}")
        A(f"v_mul_u32_u24 v{t2}, 12, v{t1}")
        A(f"v_sub_u32 v{t2}, v{t0}, v{t2}")
        A(f"v_bfe_u32 v{t3}, v{t1}, 2, 1")
        A(f"v_lshlrev_b32 v{t3}, 1, v{t3}")
        A(f"v_xor_b32 v{t2}, v{t2}, v{t3}")
        A(f"v_mul_u32_u24 v{t1}, 1152, v{t1}")
        A(f"v_lshl_add_u32 v{VWD+i}, v{t2}, 4, v{t1}")
    A("s_waitcnt lgkmcnt(0)")
    A("s_mul_i32 s46, s3, 3")
    A(f"s_add_u32 s46, s46, s{S_ROW0}")
    A("s_lshl_b32 s46, s46, 17")
    A(f"s_lshl_b32 s47, s{S_KQ}, 15")
    A("s_add_u32 s46, s46, s47")
    A(f"s_add_u32 s{SRD_O}, s40, s46")
    A(f"s_addc_u32 s{SRD_O+1}, s41, 0")
    A(f"s_sub_u32 s{SRD_O+2}, {120*131072}, s46")
    A(f"s_mov_b32 s{SRD_O+3}, 0x20000")
    A(f"s_mul_i32 s46, s{S_KQ}, 1179648")
    A(f"s_mul_i32 s47, s{S_NT}, 192")
    A("s_add_u32 s46, s46, s47")
    A(f"s_add_u32 s{SRD_WO}, s36, s46")
    A(f"s_addc_u32 s{SRD_WO+1}, s37, 0")
    A(f"s_sub_u32 s{SRD_WO+2}, {4096*1152}, s46")
    A(f"s_mov_b32 s{SRD_WO+3}, 0x20000")
    A("s_mul_i32 s31, s3, 3072")
    def loads(c):
        slot = c % 4
        ops = []
        first = [f"s_mul_i32 s42, s{S_C}, 73728", f"s_lshl_b32 s43, s{S_C}, 11"]
        for i in range(3):
            ops.append(((first if i == 0 else []) + [f"s_add_u32 m0, s31, {slot*12288 + i*1024}"],
                        f"buffer_load_dwordx4 v{VWD+i}, s[{SRD_WO}:{SRD_WO+3}], s42 offen {NT} lds"))
        k = 0
        for s_ in range(2):
            for mt in range(3):
                pre = [f"s_add_u32 s47, s43, {mt*131072 + s_*1024}"]
                if k == 5: pre += [f"s_add_u32 s{S_C}, s{S_C}, 1", f"s_and_b32 s{S_C}, s{S_C}, 15"]
                ops.append((pre, f"buffer_load_dwordx4 {vr(BF(slot, s_, mt))}, v{VBO}, s[{SRD_O}:{SRD_O+3}], s47 offen {NT}"))
                k += 1
        return ops
    def emit(ops):
        for p_, ld in ops:
            for x in p_: A(x)
            if "m0" in p_[-1]: A("s_nop 0")
            A(ld)
    emit(loads(0))
    A(f"v_lshrrev_b32 v{t0}, 4, v{L}")
    A(f"v_bfe_u32 v{t1}, v{L}, 2, 2")
    A(f"v_lshl_add_u32 v{t1}, v{t0}, 2, v{t1}")
    A(f"v_mul_u32_u24 v{t1}, 192, v{t1}")
    A(f"v_and_b32 v{t2}, 1, v{L}")
    A(f"v_lshl_add_u32 v{t1}, v{t2}, 3, v{t1}")
    A(f"v_bfe_u32 v{t2}, v{L}, 1, 1")
    A(f"v_lshl_add_u32 v{t1}, v{t2}, 4, v{t1}")
    A(f"v_and_b32 v{t0}, 1, v{t0}")
    for b in range(2):
        A(f"v_xor_b32 v{t2}, {b}, v{t0}")
        A(f"v_lshl_add_u32 v{VAR+b}, v{t2}, 5, v{t1}")
    A(f"s_mov_b32 s{SRD_OUT}, s38")
    A(f"s_mov_b32 s{SRD_OUT+1}, s39")
    A(f"s_mov_b32 s{SRD_OUT+2}, {1920*1152}")
    A(f"s_mov_b32 s{SRD_OUT+3}, 0x20000")
    A(f"s_mov_b32 s{SRD_P}, s40")
    A(f"s_mov_b32 s{SRD_P+1}, s41")
    A(f"s_mov_b32 s{SRD_P+2}, {PART_OFF + 60*16*18432}")
    A(f"s_mov_b32 s{SRD_P+3}, 0x20000")
    emit(loads(1))
    emit(loads(2))
    def areads(n):
        c, s_ = n // 2, n % 2
        buf = n & 1
        ops = []
        for nt in range(6):
            for t in range(2):
                r = AF(buf, nt) + 2*t
                ops.append(f"ds_read_b64_tr_b16 a[{r}:{r+1}], v{VAR + (nt & 1)} offset:{(c % 4)*12288 + s_*6144 + t*3072 + (nt >> 1)*64}")
        return ops
    A("s_waitcnt vmcnt(18)")
    A("s_barrier")
    if stamps: A("s_memrealtime s[62:63]")
    for x in areads(0): A(x)
    def step(n, first, do_load, last):
        c, s_ = n // 2, n % 2
        buf = n & 1
        mf = []
        for nt in range(6):
            for mt in range(3):
                acc = ACC(mt, nt)
                mf.append(f"v_mfma_f32_16x16x32_bf16 {ar(acc)}, {ar(AF(buf, nt))}, {vr(BF(c % 4, s_, mt))}, {'0' if first else ar(acc)}")
        A("s_waitcnt lgkmcnt(0)")
        sc = [[] for _ in mf]; vec = [[] for _ in mf]
        if s_ == 1 and not last:
            A(f"s_waitcnt vmcnt({9 if do_load != 'drain' else 0})")
            A("s_barrier")
        if not last:
            rd = areads(n + 1)
            for i_, x in enumerate(rd): vec[(i_ * 4) // 3].append(x)
        return mf, sc, vec
    def emit_step(mf, sc, vec):
        for m, s_, v_ in zip(mf, sc, vec):
            A(m)
            for x in s_: A(x)
            for x in v_: A(x)
    def place(ops, sc, vec, gaps):
        for (p_, ld), g in zip(ops, gaps):
            sc[g] += p_
            if "m0" in p_[-1]: sc[g].append("s_nop 0")
            vec[g].append(ld)
    def chunk(c, first=False, load=True, drain=False, last=False):
        mf, sc, vec = step(2*c, first, load, False)
        if pend: place(pend[:], sc, vec, [2, 6, 10, 14]); pend.clear()
        emit_step(mf, sc, vec)
        mf, sc, vec = step(2*c + 1, False, 'drain' if drain else load, last)
        if load:
            ops = loads(c + 3)
            place(ops[:5], sc, vec, [1, 5, 8, 12, 16])
            pend.extend(ops[5:])
        emit_step(mf, sc, vec)
    pend = []
    chunk(0, first=True)
    chunk(1); chunk(2); chunk(3)
    A("s_mov_b32 s44, 0")
    A.label("L2_loop")
    save = list(pend)
    for u in range(4): chunk(4 + u)
    A("s_add_u32 s44, s44, 1")
    A("s_cmp_lt_u32 s44, 2")
    A("s_cbranch_scc1 L2_loop")
    assert [x[1] for x in save] == [x[1] for x in pend]
    chunk(12)
    chunk(13, load=False, drain=False) if False else None
    def chunk_tail(c, n_after, last=False):
        mf, sc, vec = step(2*c, False, False, False)
        if pend: place(pend[:], sc, vec, [2, 6, 10, 14]); pend.clear()
        emit_step(mf, sc, vec)
        n = 2*c + 1
        buf = n & 1
        mf = []
        for nt in range(6):
            for mt in range(3):
                acc = ACC(mt, nt)
                mf.append(f"v_mfma_f32_16x16x32_bf16 {ar(acc)}, {ar(AF(buf, nt))}, {vr(BF(c % 4, 1, mt))}, {ar(acc)}")
        A("s_waitcnt lgkmcnt(0)")
        sc = [[] for _ in mf]; vec = [[] for _ in mf]
        if not last:
            A(f"s_waitcnt vmcnt({n_after})")
            A("s_barrier")
            for i_, x in enumerate(areads(n + 1)): vec[(i_ * 4) // 3].append(x)
        emit_step(mf, sc, vec)
    chunk_tail(13, 9)
    chunk_tail(14, 0)
    chunk_tail(15, 0, last=True)
    if stamps: A("s_memrealtime s[64:65]")
    A("s_barrier")
    A(f"s_lshl_b32 s46, s{S_GRP}, 2")
    A("s_nop 7")
    A(f"s_cmp_eq_u32 s3, s{S_KQ}")
    A("s_cbranch_scc1 L2_keep")
    A("s_add_u32 s47, s46, s3")
    A("s_lshl_b32 s47, s47, 2")
    A(f"s_add_u32 s47, s47, s{S_KQ}")
    A("s_mul_i32 s47, s47, 18432")
    A(f"s_add_u32 s47, s47, {PART_OFF}")
    for tl in range(18):
        if tl and tl % 4 == 0: A("s_add_u32 s47, s47, 4096")
        acc = 48 + tl*4
        A(f"buffer_store_dwordx4 {ar(acc)}, v{VBO}, s[{SRD_P}:{SRD_P+3}], s47 offen offset:{(tl % 4)*1024} sc1")
    A("s_branch L2_sent")
    A.label("L2_keep")
    for tl in range(18):
        A(f"ds_write_b128 v{VBO}, {ar(48 + tl*4)} offset:{tl*1024}")
    A.label("L2_sent")
    A("s_waitcnt vmcnt(0) lgkmcnt(0)")
    A("s_barrier")
    A("s_cmp_lg_u32 s3, 0")
    A("s_cbranch_scc1 L2_polled")
    A(f"s_add_u32 s47, s46, s{S_KQ}")
    A("s_lshl_b32 s47, s47, 7")
    A(f"s_add_u32 s47, s47, {FLAGS_OFF}")
    A(f"v_mov_b32 v{t0}, 1")
    A(f"v_mov_b32 v{t1}, 0")
    A(f"v_cmp_eq_u32 vcc, 0, v{L}")
    A("s_and_saveexec_b64 s[48:49], vcc")
    A(f"buffer_store_dword v{t0}, v{t1}, s[{SRD_P}:{SRD_P+3}], s47 offen sc1")
    A("s_mov_b64 exec, s[48:49]")
    A(f"v_and_b32 v{t1}, 3, v{L}")
    A(f"v_lshlrev_b32 v{t1}, 7, v{t1}")
    A("s_lshl_b32 s47, s46, 7")
    A(f"s_add_u32 s47, s47, {FLAGS_OFF}")
    A("s_mov_b32 s50, 0")
    A.label("L2_poll")
    A(f"buffer_load_dword v{t2}, v{t1}, s[{SRD_P}:{SRD_P+3}], s47 offen sc1")
    A("s_waitcnt vmcnt(0)")
    A(f"v_cmp_ne_u32 vcc, 1, v{t2}")
    A("s_add_u32 s50, s50, 1")
    A("s_nop 3")
    A("s_cmp_eq_u64 vcc, 0")
    A("s_cbranch_scc1 L2_polled")
    A("s_cmp_lt_u32 s50, 0x200000")
    A("s_cbranch_scc0 L2_polled")
    A("s_sleep 1")
    A("s_branch L2_poll")
    A.label("L2_polled")
    A("s_barrier")
    if stamps: A("s_memrealtime s[66:67]")
    A(f"s_add_u32 s47, s46, s{S_KQ}")
    A("s_lshl_b32 s47, s47, 2")
    for d in range(1, 4):
        A(f"s_add_u32 s48, s{S_KQ}, {d}")
        A("s_and_b32 s48, s48, 3")
        A("s_add_u32 s48, s48, s47")
        A("s_mul_i32 s48, s48, 18432")
        A(f"s_add_u32 s{50+d}, s48, {PART_OFF}")
    A("s_lshl_b32 s45, s3, 10")
    A(f"v_add_u32 v{t0}, s45, v{VBO}")
    R = lambda i, d: 32 + i*16 + d*4
    for i in range(5):
        if i == 4:
            A("s_cmp_ge_u32 s3, 2")
            A("s_cbranch_scc1 L2_ld_done")
        for d in range(1, 4):
            A(f"s_add_u32 s48, s{50+d}, {i*4096}")
            A(f"buffer_load_dwordx4 {vr(R(i, d))}, v{t0}, s[{SRD_P}:{SRD_P+3}], s48 offen sc1")
        A(f"ds_read_b128 {vr(R(i, 0))}, v{t0} offset:{i*4096}")
    A.label("L2_ld_done")
    A(f"v_and_b32 v{t1}, 15, v{L}")
    A(f"v_mul_u32_u24 v{t1}, 1152, v{t1}")
    A(f"v_lshrrev_b32 v{t2}, 4, v{L}")
    A(f"v_lshl_add_u32 v{t1}, v{t2}, 3, v{t1}")
    A(f"s_lshl_b32 s46, s{S_ROW0}, 4")
    A(f"s_mul_i32 s47, s{S_KQ}, 48")
    A("s_add_u32 s46, s46, s47")
    A("s_mul_i32 s46, s46, 1152")
    A(f"s_mul_i32 s47, s{S_NT}, 192")
    A("s_add_u32 s46, s46, s47")
    A("s_waitcnt vmcnt(0) lgkmcnt(0)")
    for i in range(5):
        if i == 4:
            A("s_cmp_ge_u32 s3, 2")
            A("s_cbranch_scc1 L2_fin")
        r0 = R(i, 0)
        for k in range(4):
            A(f"v_add_f32 v{r0+k}, v{r0+k}, v{r0+4+k}")
            A(f"v_add_f32 v{r0+8+k}, v{r0+8+k}, v{r0+12+k}")
        for k in range(4):
            A(f"v_add_f32 v{r0+k}, v{r0+k}, v{r0+8+k}")
        A(f"v_cvt_pk_bf16_f32 v{r0+4}, v{r0}, v{r0+1}")
        A(f"v_cvt_pk_bf16_f32 v{r0+5}, v{r0+2}, v{r0+3}")
        A(f"s_add_u32 s47, s3, {4*i}")
        A("s_mul_i32 s48, s47, 43")
        A("s_lshr_b32 s48, s48, 8")
        A("s_mul_i32 s49, s48, 6")
        A("s_sub_u32 s49, s47, s49")
        A("s_mul_i32 s48, s48, 18432")
        A("s_lshl_b32 s49, s49, 5")
        A("s_add_u32 s48, s48, s49")
        A("s_add_u32 s48, s48, s46")
        A(f"buffer_store_dwordx2 v[{r0+4}:{r0+5}], v{t1}, s[{SRD_OUT}:{SRD_OUT+3}], s48 offen")
    A.label("L2_fin")
    if stamps:
        A("s_waitcnt vmcnt(0)")
        A("s_memrealtime s[68:69]")
        A("s_waitcnt lgkmcnt(0)")
        A("s_cmp_lg_u32 s3, 0")
        A("s_cbranch_scc1 L2_done")
        if opt.get("dbg2"):
            A("s_cmp_lg_u32 s2, 0")
            A("s_cbranch_scc1 L2_done")
            A("s_load_dwordx2 s[96:97], s[0:1], 48")
            A("s_add_u32 s70, s40, 0x1000000"); A("s_addc_u32 s71, s41, 0")
            A("s_load_dwordx8 s[72:79], s[70:71], 0")
            A(f"s_load_dwordx8 s[80:87], s[70:71], {133*32}")
            A("s_waitcnt lgkmcnt(0)")
            A("s_mov_b32 s92, s96"); A("s_and_b32 s93, s97, 0xffff"); A("s_mov_b32 s94, 256"); A("s_mov_b32 s95, 0x20000")
            k = 0
            for r in range(73, 79):
                A(f"s_sub_u32 s46, s{r}, s72"); A(f"v_mov_b32 v{32+k}, s46"); k += 1
            for r in (82, 84, 86):
                A(f"s_sub_u32 s46, s{r}, s80"); A(f"v_mov_b32 v{32+k}, s46"); k += 1
            for r in (60, 62, 64, 66, 68):
                A(f"s_sub_u32 s46, s{r}, s72"); A(f"v_mov_b32 v{32+k}, s46"); k += 1
            A("v_mov_b32 v46, 0"); A("v_mov_b32 v47, 0"); A("v_mov_b32 v16, 0")
            A(f"v_cmp_eq_u32 vcc, 0, v{VLANE}")
            A("s_and_saveexec_b64 s[48:49], vcc")
            for q_ in range(4):
                A(f"buffer_store_dwordx4 v[{32+4*q_}:{35+4*q_}], v16, s[92:95], 0 offen offset:{16*q_}")
            A("s_endpgm")
        for i_, r in enumerate([60, 62, 64, 66, 68]):
            A(f"v_mov_b32 v{8+i_}, s{r}")
        A("s_lshl_b32 s46, s2, 5")
        A("s_add_u32 s46, s46, 0x1010000")
        A("v_mov_b32 v16, s46")
        A(f"v_cmp_eq_u32 vcc, 0, v{VLANE}")
        A("s_and_saveexec_b64 s[48:49], vcc")
        A("s_cbranch_execz L2_done")
        A(f"buffer_store_dwordx4 v[8:11], v16, s[{SRD_P}:{SRD_P+3}], 0 offen")
        A(f"buffer_store_dword v12, v16, s[{SRD_P}:{SRD_P+3}], 0 offen offset:16")
    A.label("L2_done")
    A("s_endpgm")
```

```python
from asmlib import *
import re
K2 = 'oproj_kernel'
LDS = 49152
VGPR = 256
ACCUM = 128
NWG = 240
FLAGS_OFF = 0x1080000
PART_OFF = 0x1200000
VLANE = 0
VBO = 1
VWD = 2
VAR = 5
VT = 8
BF = lambda slot, s, mt: 32 + slot*24 + (s*3 + mt)*4
AF = lambda buf, nt: buf*24 + nt*4
ACC = lambda mt, nt: 48 + (mt*6 + nt)*4
SRD_O, SRD_WO, SRD_OUT, SRD_P = 8, 12, 16, 20
S_KQ, S_NT, S_ROW0, S_GRP, S_C = 32, 33, 34, 35, 30
def vr(n, c=4): return f"v[{n}:{n+c-1}]"
def ar(n, c=4): return f"a[{n}:{n+c-1}]"

def gen(A, opt):
    NT = opt.get("k2nt", "")
    stamps = opt.get("stamps", False)
    kernel_begin(A, K2)
    A(f"s_cmp_ge_u32 s2, {NWG}")
    A("s_cbranch_scc1 L2_done")
    A("s_load_dwordx4 s[36:39], s[0:1], 32")
    A("s_load_dwordx2 s[40:41], s[0:1], 56")
    if stamps: A("s_memrealtime s[60:61]")
    t0, t1, t2, t3, t4, t5 = [VT + i for i in range(6)]
    L = VLANE
    A(f"v_lshrrev_b32 v{t0}, 6, v0")
    A(f"v_and_b32 v{L}, 63, v0")
    A("s_and_b32 s46, s2, 7")
    A("s_lshr_b32 s47, s2, 3")
    A(f"v_readfirstlane_b32 s3, v{t0}")
    A("s_mul_i32 s48, s47, 43")
    A("s_lshr_b32 s48, s48, 8")
    A("s_mul_i32 s49, s48, 6")
    A(f"s_sub_u32 s{S_NT}, s47, s49")
    A(f"s_lshr_b32 s{S_KQ}, s46, 1")
    A("s_and_b32 s46, s46, 1")
    A("s_mul_i32 s49, s46, 5")
    A("s_add_u32 s49, s49, s48")
    A(f"s_mul_i32 s{S_GRP}, s49, 6")
    A(f"s_add_u32 s{S_GRP}, s{S_GRP}, s{S_NT}")
    A(f"s_mul_i32 s{S_ROW0}, s49, 12")
    A(f"s_add_u32 s{S_C}, s{S_NT}, s48")
    A(f"s_mul_i32 s{S_C}, s{S_C}, 3")
    A(f"s_and_b32 s{S_C}, s{S_C}, 15")
    if not opt.get("k2rot", True): A(f"s_mov_b32 s{S_C}, 0")
    A(f"v_lshlrev_b32 v{VBO}, 4, v{L}")
    A("s_mul_i32 s46, s3, 192")
    A("s_mov_b32 s47, 43691")
    for i in range(3):
        A(f"v_add_u32 v{t0}, s46, v{L}")
        if i: A(f"v_add_u32 v{t0}, {64*i}, v{t0}")
        A(f"v_mul_lo_u32 v{t1}, v{t0}, s47")
        A(f"v_lshrrev_b32 v{t1}, 19, v{t1}")
        A(f"v_mul_u32_u24 v{t2}, 12, v{t1}")
        A(f"v_sub_u32 v{t2}, v{t0}, v{t2}")
        A(f"v_bfe_u32 v{t3}, v{t1}, 2, 1")
        A(f"v_lshlrev_b32 v{t3}, 1, v{t3}")
        A(f"v_xor_b32 v{t2}, v{t2}, v{t3}")
        A(f"v_mul_u32_u24 v{t1}, 1152, v{t1}")
        A(f"v_lshl_add_u32 v{VWD+i}, v{t2}, 4, v{t1}")
    A("s_waitcnt lgkmcnt(0)")
    A("s_mul_i32 s46, s3, 3")
    A(f"s_add_u32 s46, s46, s{S_ROW0}")
    A("s_lshl_b32 s46, s46, 17")
    A(f"s_lshl_b32 s47, s{S_KQ}, 15")
    A("s_add_u32 s46, s46, s47")
    A(f"s_add_u32 s{SRD_O}, s40, s46")
    A(f"s_addc_u32 s{SRD_O+1}, s41, 0")
    A(f"s_sub_u32 s{SRD_O+2}, {120*131072}, s46")
    A(f"s_mov_b32 s{SRD_O+3}, 0x20000")
    A(f"s_mul_i32 s46, s{S_KQ}, 1179648")
    A(f"s_mul_i32 s47, s{S_NT}, 192")
    A("s_add_u32 s46, s46, s47")
    A(f"s_add_u32 s{SRD_WO}, s36, s46")
    A(f"s_addc_u32 s{SRD_WO+1}, s37, 0")
    A(f"s_sub_u32 s{SRD_WO+2}, {4096*1152}, s46")
    A(f"s_mov_b32 s{SRD_WO+3}, 0x20000")
    A("s_mul_i32 s31, s3, 3072")
    def loads(c):
        slot = c % 4
        ops = []
        first = [f"s_mul_i32 s42, s{S_C}, 73728", f"s_lshl_b32 s43, s{S_C}, 11"]
        for i in range(3):
            ops.append(((first if i == 0 else []) + [f"s_add_u32 m0, s31, {slot*12288 + i*1024}"],
                        f"buffer_load_dwordx4 v{VWD+i}, s[{SRD_WO}:{SRD_WO+3}], s42 offen {NT} lds"))
        k = 0
        for s_ in range(2):
            for mt in range(3):
                pre = [f"s_add_u32 s47, s43, {mt*131072 + s_*1024}"]
                if k == 5: pre += [f"s_add_u32 s{S_C}, s{S_C}, 1", f"s_and_b32 s{S_C}, s{S_C}, 15"]
                ops.append((pre, f"buffer_load_dwordx4 {vr(BF(slot, s_, mt))}, v{VBO}, s[{SRD_O}:{SRD_O+3}], s47 offen {NT}"))
                k += 1
        return ops
    def emit(ops):
        for p_, ld in ops:
            for x in p_: A(x)
            if "m0" in p_[-1]: A("s_nop 0")
            A(ld)
    emit(loads(0))
    A(f"v_lshrrev_b32 v{t0}, 4, v{L}")
    A(f"v_bfe_u32 v{t1}, v{L}, 2, 2")
    A(f"v_lshl_add_u32 v{t1}, v{t0}, 2, v{t1}")
    A(f"v_mul_u32_u24 v{t1}, 192, v{t1}")
    A(f"v_and_b32 v{t2}, 1, v{L}")
    A(f"v_lshl_add_u32 v{t1}, v{t2}, 3, v{t1}")
    A(f"v_bfe_u32 v{t2}, v{L}, 1, 1")
    A(f"v_lshl_add_u32 v{t1}, v{t2}, 4, v{t1}")
    A(f"v_and_b32 v{t0}, 1, v{t0}")
    for b in range(2):
        A(f"v_xor_b32 v{t2}, {b}, v{t0}")
        A(f"v_lshl_add_u32 v{VAR+b}, v{t2}, 5, v{t1}")
    A(f"s_mov_b32 s{SRD_OUT}, s38")
    A(f"s_mov_b32 s{SRD_OUT+1}, s39")
    A(f"s_mov_b32 s{SRD_OUT+2}, {1920*1152}")
    A(f"s_mov_b32 s{SRD_OUT+3}, 0x20000")
    A(f"s_mov_b32 s{SRD_P}, s40")
    A(f"s_mov_b32 s{SRD_P+1}, s41")
    A(f"s_mov_b32 s{SRD_P+2}, {PART_OFF + 60*16*18432}")
    A(f"s_mov_b32 s{SRD_P+3}, 0x20000")
    emit(loads(1))
    emit(loads(2))
    def areads(n):
        c, s_ = n // 2, n % 2
        buf = n & 1
        ops = []
        for nt in range(6):
            for t in range(2):
                r = AF(buf, nt) + 2*t
                ops.append(f"ds_read_b64_tr_b16 a[{r}:{r+1}], v{VAR + (nt & 1)} offset:{(c % 4)*12288 + s_*6144 + t*3072 + (nt >> 1)*64}")
        return ops
    A("s_waitcnt vmcnt(18)")
    A("s_barrier")
    if stamps: A("s_memrealtime s[62:63]")
    for x in areads(0): A(x)
    def step(n, first, do_load, last):
        c, s_ = n // 2, n % 2
        buf = n & 1
        mf = []
        for nt in range(6):
            for mt in range(3):
                acc = ACC(mt, nt)
                mf.append(f"v_mfma_f32_16x16x32_bf16 {ar(acc)}, {ar(AF(buf, nt))}, {vr(BF(c % 4, s_, mt))}, {'0' if first else ar(acc)}")
        A("s_waitcnt lgkmcnt(0)")
        sc = [[] for _ in mf]; vec = [[] for _ in mf]
        if s_ == 1 and not last:
            A(f"s_waitcnt vmcnt({9 if do_load != 'drain' else 0})")
            A("s_barrier")
        if not last:
            rd = areads(n + 1)
            for i_, x in enumerate(rd): vec[(i_ * 4) // 3].append(x)
        return mf, sc, vec
    def emit_step(mf, sc, vec):
        for m, s_, v_ in zip(mf, sc, vec):
            A(m)
            for x in s_: A(x)
            for x in v_: A(x)
    def place(ops, sc, vec, gaps):
        for (p_, ld), g in zip(ops, gaps):
            sc[g] += p_
            if "m0" in p_[-1]: sc[g].append("s_nop 0")
            vec[g].append(ld)
    def chunk(c, first=False, load=True, drain=False, last=False):
        mf, sc, vec = step(2*c, first, load, False)
        if pend: place(pend[:], sc, vec, [2, 6, 10, 14]); pend.clear()
        emit_step(mf, sc, vec)
        mf, sc, vec = step(2*c + 1, False, 'drain' if drain else load, last)
        if load:
            ops = loads(c + 3)
            place(ops[:5], sc, vec, [1, 5, 8, 12, 16])
            pend.extend(ops[5:])
        emit_step(mf, sc, vec)
    pend = []
    chunk(0, first=True)
    chunk(1); chunk(2); chunk(3)
    A("s_mov_b32 s44, 0")
    A.label("L2_loop")
    save = list(pend)
    for u in range(4): chunk(4 + u)
    A("s_add_u32 s44, s44, 1")
    A("s_cmp_lt_u32 s44, 2")
    A("s_cbranch_scc1 L2_loop")
    assert [x[1] for x in save] == [x[1] for x in pend]
    chunk(12)
    chunk(13, load=False, drain=False) if False else None
    def chunk_tail(c, n_after, last=False):
        mf, sc, vec = step(2*c, False, False, False)
        if pend: place(pend[:], sc, vec, [2, 6, 10, 14]); pend.clear()
        emit_step(mf, sc, vec)
        n = 2*c + 1
        buf = n & 1
        mf = []
        for nt in range(6):
            for mt in range(3):
                acc = ACC(mt, nt)
                mf.append(f"v_mfma_f32_16x16x32_bf16 {ar(acc)}, {ar(AF(buf, nt))}, {vr(BF(c % 4, 1, mt))}, {ar(acc)}")
        A("s_waitcnt lgkmcnt(0)")
        sc = [[] for _ in mf]; vec = [[] for _ in mf]
        if not last:
            A(f"s_waitcnt vmcnt({n_after})")
            A("s_barrier")
            for i_, x in enumerate(areads(n + 1)): vec[(i_ * 4) // 3].append(x)
        emit_step(mf, sc, vec)
    chunk_tail(13, 9)
    chunk_tail(14, 0)
    chunk_tail(15, 0, last=True)
    if stamps: A("s_memrealtime s[64:65]")
    A("s_barrier")
    A(f"s_lshl_b32 s46, s{S_GRP}, 2")
    A("s_nop 7")
    A(f"s_cmp_eq_u32 s3, s{S_KQ}")
    A("s_cbranch_scc1 L2_keep")
    A("s_add_u32 s47, s46, s3")
    A("s_lshl_b32 s47, s47, 2")
    A(f"s_add_u32 s47, s47, s{S_KQ}")
    A("s_mul_i32 s47, s47, 18432")
    A(f"s_add_u32 s47, s47, {PART_OFF}")
    for tl in range(18):
        if tl and tl % 4 == 0: A("s_add_u32 s47, s47, 4096")
        acc = 48 + tl*4
        A(f"buffer_store_dwordx4 {ar(acc)}, v{VBO}, s[{SRD_P}:{SRD_P+3}], s47 offen offset:{(tl % 4)*1024} sc1")
    A("s_branch L2_sent")
    A.label("L2_keep")
    for tl in range(18):
        A(f"ds_write_b128 v{VBO}, {ar(48 + tl*4)} offset:{tl*1024}")
    A.label("L2_sent")
    A("s_waitcnt vmcnt(0) lgkmcnt(0)")
    A("s_barrier")
    A("s_cmp_lg_u32 s3, 0")
    A("s_cbranch_scc1 L2_polled")
    A(f"s_add_u32 s47, s46, s{S_KQ}")
    A("s_lshl_b32 s47, s47, 7")
    A(f"s_add_u32 s47, s47, {FLAGS_OFF}")
    A(f"v_mov_b32 v{t0}, 1")
    A(f"v_mov_b32 v{t1}, 0")
    A(f"v_cmp_eq_u32 vcc, 0, v{L}")
    A("s_and_saveexec_b64 s[48:49], vcc")
    A(f"buffer_store_dword v{t0}, v{t1}, s[{SRD_P}:{SRD_P+3}], s47 offen sc1")
    A("s_mov_b64 exec, s[48:49]")
    A(f"v_and_b32 v{t1}, 3, v{L}")
    A(f"v_lshlrev_b32 v{t1}, 7, v{t1}")
    A("s_lshl_b32 s47, s46, 7")
    A(f"s_add_u32 s47, s47, {FLAGS_OFF}")
    A("s_mov_b32 s50, 0")
    A.label("L2_poll")
    A(f"buffer_load_dword v{t2}, v{t1}, s[{SRD_P}:{SRD_P+3}], s47 offen sc1")
    A("s_waitcnt vmcnt(0)")
    A(f"v_cmp_ne_u32 vcc, 1, v{t2}")
    A("s_add_u32 s50, s50, 1")
    A("s_nop 3")
    A("s_cmp_eq_u64 vcc, 0")
    A("s_cbranch_scc1 L2_polled")
    A("s_cmp_lt_u32 s50, 0x200000")
    A("s_cbranch_scc0 L2_polled")
    A("s_sleep 1")
    A("s_branch L2_poll")
    A.label("L2_polled")
    A("s_barrier")
    if stamps: A("s_memrealtime s[66:67]")
    A(f"s_add_u32 s47, s46, s{S_KQ}")
    A("s_lshl_b32 s47, s47, 2")
    for d in range(1, 4):
        A(f"s_add_u32 s48, s{S_KQ}, {d}")
        A("s_and_b32 s48, s48, 3")
        A("s_add_u32 s48, s48, s47")
        A("s_mul_i32 s48, s48, 18432")
        A(f"s_add_u32 s{50+d}, s48, {PART_OFF}")
    A("s_lshl_b32 s45, s3, 10")
    A(f"v_add_u32 v{t0}, s45, v{VBO}")
    R = lambda i, d: 32 + i*16 + d*4
    for i in range(5):
        if i == 4:
            A("s_cmp_ge_u32 s3, 2")
            A("s_cbranch_scc1 L2_ld_done")
        for d in range(1, 4):
            A(f"s_add_u32 s48, s{50+d}, {i*4096}")
            A(f"buffer_load_dwordx4 {vr(R(i, d))}, v{t0}, s[{SRD_P}:{SRD_P+3}], s48 offen sc1")
        A(f"ds_read_b128 {vr(R(i, 0))}, v{t0} offset:{i*4096}")
    A.label("L2_ld_done")
    A(f"v_and_b32 v{t1}, 15, v{L}")
    A(f"v_mul_u32_u24 v{t1}, 1152, v{t1}")
    A(f"v_lshrrev_b32 v{t2}, 4, v{L}")
    A(f"v_lshl_add_u32 v{t1}, v{t2}, 3, v{t1}")
    A(f"s_lshl_b32 s46, s{S_ROW0}, 4")
    A(f"s_mul_i32 s47, s{S_KQ}, 48")
    A("s_add_u32 s46, s46, s47")
    A("s_mul_i32 s46, s46, 1152")
    A(f"s_mul_i32 s47, s{S_NT}, 192")
    A("s_add_u32 s46, s46, s47")
    A("s_waitcnt vmcnt(0) lgkmcnt(0)")
    for i in range(5):
        if i == 4:
            A("s_cmp_ge_u32 s3, 2")
            A("s_cbranch_scc1 L2_fin")
        r0 = R(i, 0)
        for k in range(4):
            A(f"v_add_f32 v{r0+k}, v{r0+k}, v{r0+4+k}")
            A(f"v_add_f32 v{r0+8+k}, v{r0+8+k}, v{r0+12+k}")
        for k in range(4):
            A(f"v_add_f32 v{r0+k}, v{r0+k}, v{r0+8+k}")
        A(f"v_cvt_pk_bf16_f32 v{r0+4}, v{r0}, v{r0+1}")
        A(f"v_cvt_pk_bf16_f32 v{r0+5}, v{r0+2}, v{r0+3}")
        A(f"s_add_u32 s47, s3, {4*i}")
        A("s_mul_i32 s48, s47, 43")
        A("s_lshr_b32 s48, s48, 8")
        A("s_mul_i32 s49, s48, 6")
        A("s_sub_u32 s49, s47, s49")
        A("s_mul_i32 s48, s48, 18432")
        A("s_lshl_b32 s49, s49, 5")
        A("s_add_u32 s48, s48, s49")
        A("s_add_u32 s48, s48, s46")
        A(f"buffer_store_dwordx2 v[{r0+4}:{r0+5}], v{t1}, s[{SRD_OUT}:{SRD_OUT+3}], s48 offen")
    A.label("L2_fin")
    if stamps:
        A("s_waitcnt vmcnt(0)")
        A("s_memrealtime s[68:69]")
        A("s_waitcnt lgkmcnt(0)")
        A("s_cmp_lg_u32 s3, 0")
        A("s_cbranch_scc1 L2_done")
        if opt.get("dbg2"):
            A("s_cmp_lg_u32 s2, 0")
            A("s_cbranch_scc1 L2_done")
            A("s_load_dwordx2 s[96:97], s[0:1], 48")
            A("s_add_u32 s70, s40, 0x1000000"); A("s_addc_u32 s71, s41, 0")
            A("s_load_dwordx8 s[72:79], s[70:71], 0")
            A(f"s_load_dwordx8 s[80:87], s[70:71], {133*32}")
            A("s_waitcnt lgkmcnt(0)")
            if opt.get("spin"):
                A.label("L2_spin")
                A("s_memrealtime s[88:89]")
                A("s_waitcnt lgkmcnt(0)")
                A("s_sub_u32 s46, s88, s72")
                A(f"s_cmp_lt_u32 s46, {opt['spin']}")
                A("s_cbranch_scc1 L2_spin")
            A("s_mov_b32 s92, s96"); A("s_and_b32 s93, s97, 0xffff"); A("s_mov_b32 s94, 256"); A("s_mov_b32 s95, 0x20000")
            k = 0
            for r in range(73, 79):
                A(f"s_sub_u32 s46, s{r}, s72"); A(f"v_mov_b32 v{32+k}, s46"); k += 1
            for r in (82, 84, 86):
                A(f"s_sub_u32 s46, s{r}, s80"); A(f"v_mov_b32 v{32+k}, s46"); k += 1
            for r in (60, 62, 64, 66, 68):
                A(f"s_sub_u32 s46, s{r}, s72"); A(f"v_mov_b32 v{32+k}, s46"); k += 1
            A("v_mov_b32 v46, 0"); A("v_mov_b32 v47, 0"); A("v_mov_b32 v16, 0")
            A(f"v_cmp_eq_u32 vcc, 0, v{VLANE}")
            A("s_and_saveexec_b64 s[48:49], vcc")
            for q_ in range(4):
                A(f"buffer_store_dwordx4 v[{32+4*q_}:{35+4*q_}], v16, s[92:95], 0 offen offset:{16*q_}")
            A("s_endpgm")
        for i_, r in enumerate([60, 62, 64, 66, 68]):
            A(f"v_mov_b32 v{8+i_}, s{r}")
        A("s_lshl_b32 s46, s2, 5")
        A("s_add_u32 s46, s46, 0x1010000")
        A("v_mov_b32 v16, s46")
        A(f"v_cmp_eq_u32 vcc, 0, v{VLANE}")
        A("s_and_saveexec_b64 s[48:49], vcc")
        A("s_cbranch_execz L2_done")
        A(f"buffer_store_dwordx4 v[8:11], v16, s[{SRD_P}:{SRD_P+3}], 0 offen")
        A(f"buffer_store_dword v12, v16, s[{SRD_P}:{SRD_P+3}], 0 offen offset:16")
    A.label("L2_done")
    A("s_endpgm")
```

```python
import sys, math, struct, copy, re
from asmlib import *

K1 = 'attn_kernel'
K2 = 'oproj_kernel'
SCALE = (128 ** -0.5) * math.log2(math.e)
def f2u(x): return struct.unpack("<I", struct.pack("<f", x))[0]

KRING, VRING = 0, 65536
XS = [16384, 49152, 81920]
WS = [114688, 131072, 147456]
LDS_K1 = 163840
SB = lambda e, j, kt: e*32 + (j*2 + kt)*4
PB = lambda e, j: 64 + e*16 + j*4
NEGM = lambda j: 96 + j*4
QACC = lambda T, j: (T*4 + j)*4
QF = lambda j, m: 128 + (j*4 + m)*4
VKR = 192
VVR = 196
VKD = 204
VVD = 208
VXR = 210
VWR = 214
VXD = 218
VWD = 220
VLANE = 221
VT = 222
OA = lambda dt, j: (dt*4 + j)*4
KF = lambda kt, ks: 128 + (kt*4 + ks)*4
VF = lambda dt: 160 + dt*4
LA = lambda j: 192 + j*4
ONES = 208
WF = lambda buf, T: buf*32 + T*4
XF = lambda buf, j: 64 + buf*16 + j*4
S_W = 3
SRD_K, SRD_V, SRD_X, SRD_W, SRD_O = 8, 12, 16, 20, 24
S_KOFF, S_VOFF, S_GRP = 28, 29, 30
S_B, S_H = 32, 33
S_XB, S_WB = 34, 35
S_ROT, S_XO, S_WO = 50, 51, 52

FLAGO_OFF, FLAGP_OFF, NONCE_OFF, PART_OFF = 0x2300000, 0x2500000, 0x10F0000, 0x1200000
FSTRIDE = 4224
S2_KQ, S2_NT, S2_T16, S2_GRP, S2_CW, S2_CO, S_NONCE, S2_R = 86, 87, 88, 89, 90, 91, 92, 93
SRD_WO = 96
P2_NON, P2_WD, P2_BO, P2_AR = 243, 244, 247, 248
BF2 = lambda slot, s, mt: 32 + slot*24 + (s*3 + mt)*4
AF2 = lambda buf, nt: buf*24 + nt*4
ACC2 = lambda mt, nt: 48 + (mt*6 + nt)*4
NSLOT2 = 8
def vr(n, c=4): return f"v[{n}:{n+c-1}]"
def ar(n, c=4): return f"a[{n}:{n+c-1}]"
def mf16(d, a_, b_, c): return f"v_mfma_f32_16x16x32_bf16 {d}, {a_}, {b_}, {c}"

class VmTracker:
    def __init__(self): self.q = []
    def issue(self, tag): self.q.append(tag)
    def need(self, tags):
        last = -1
        for i, t in enumerate(self.q):
            if t in tags: last = i
        for t in tags:
            exp = {"o": 6, "wo": 3, "k": 8, "v": 8}.get(t[0])
            cnt = self.q.count(t)
            assert cnt > 0 and (exp is None or cnt == exp), (t, cnt)
        return min(63, len(self.q) - 1 - last)

MEMFIRST = True
class Gaps:
    def __init__(self, mf):
        self.mf = mf
        self.G = len(mf)
        self.sc = [[] for _ in mf]
        self.vec = [[] for _ in mf]
        self.before = [[] for _ in mf]
    def emit(self, A):
        for g, m in enumerate(self.mf):
            for x in self.before[g]: A(x)
            A(m)
            for x in self.sc[g]: A(x)
            v_ = self.vec[g]
            if MEMFIRST and not any(x.startswith("s_") for x in v_):
                v_ = [x for x in v_ if x.startswith(("ds_", "buffer_"))] + [x for x in v_ if not x.startswith(("ds_", "buffer_"))]
            for x in v_: A(x)

def fill_gaps(gp, estream, dstream, start=0, nslots=2):
    G = gp.G
    ei = di = 0
    last_exp = False
    for g in range(start, G):
        remaining_gaps = G - g
        ne = sum(1 for k, _ in estream[ei:] if k == 'e')
        singles = []
        def d_ok(): return di < len(dstream) and dstream[di][0] <= g
        want_exp = ei < len(estream) and estream[ei][0] == 'e' and (not last_exp or ne >= remaining_gaps or not (d_ok()))
        if want_exp:
            gp.vec[g].append(estream[ei][1]); ei += 1
            last_exp = True
            continue
        last_exp = False
        n = 0
        while n < nslots:
            if ei < len(estream) and estream[ei][0] == 'c':
                gp.vec[g].append(estream[ei][1]); ei += 1; n += 1
            elif d_ok():
                e_, pre_, txt = dstream[di]; di += 1
                gp.sc[g] += pre_
                if pre_ and any("m0" in x for x in pre_) and pre_[-1].find("m0") >= 0:
                    gp.sc[g].append("s_nop 0")
                gp.vec[g].append(txt); n += 1
            else:
                break
    tail = [t for _, t in estream[ei:]]
    dtail = dstream[di:]
    return tail, dtail

VL = 112
CVTLAG = 0
def fill_strict(gp, estream, dstream, nslots=2, lag=1):
    G = gp.G
    exps = [x for k, x in estream if k == 'e']
    singles = []
    ne = 0
    for k, x in estream:
        if k == 'e': ne += 1
        else: singles.append((ne - 1, x))
    di = si = 0
    for g in range(G):
        if g % 2 == 0 and g // 2 < len(exps):
            gp.vec[g].append(exps[g // 2])
            continue
        n = 0
        ready = si < len(singles) and 2*singles[si][0] + 1 + 2*lag <= g
        room = nslots - (1 if ready else 0)
        while n < room and di < len(dstream) and dstream[di][0] <= g:
            e_, pre_, txt = dstream[di]; di += 1
            gp.sc[g] += pre_
            if pre_ and "m0" in pre_[-1]: gp.sc[g].append("s_nop 0")
            gp.vec[g].append(txt); n += 1
        while n < nslots and si < len(singles) and 2*singles[si][0] + 1 + 2*lag <= g:
            gp.vec[g].append(singles[si][1]); si += 1; n += 1
    tail = [x for _, x in singles[si:]] + exps[(G + 1) // 2:]
    assert len(exps) <= (G + 1) // 2
    return tail, dstream[di:]

def softmax_stream(e, nj, nv=0):
    st = softmax_stream0(e, nj, nv)
    if CVTLAG == 0: return st
    out, held = [], []
    for k, x in st:
        if k == 'e':
            out.append((k, x))
            for h in held: h[0] -= 1
            while held and held[0][0] <= 0: out.append(('c', held.pop(0)[1]))
        else:
            held.append([CVTLAG, x])
    out += [('c', h[1]) for h in held]
    return out
def softmax_stream0(e, nj, nv=0):
    st = []
    for j in range(nj):
        for kt in range(2):
            S = SB(e, j, kt)
            for h in range(2):
                st.append(('e', f"v_exp_f32 v{S+2*h}, v{S+2*h}"))
                st.append(('e', f"v_exp_f32 v{S+2*h+1}, v{S+2*h+1}"))
                st.append(('c', f"v_cvt_pk_bf16_f32 v{PB(e, j) + 2*kt + h}, v{S+2*h}, v{S+2*h+1}"))
                if j < nv:
                    st.append(('c', f"v_add_f32 v{VL+j}, v{VL+j}, v{S+2*h}"))
                    st.append(('c', f"v_add_f32 v{VL+j}, v{VL+j}, v{S+2*h+1}"))
    return st

def gen_k1(A, opt):
    global CVTLAG, MEMFIRST
    CVTLAG = opt.get("cvtlag", 0)
    MEMFIRST = opt.get("memfirst", True)
    NT = opt.get("nt", "nt")
    BAR2 = opt.get("bar2", False)
    LV = opt.get("lv", 4 if BAR2 else 3); LK = LV + 3
    KPRE = min(8, LK) if opt.get("kpre_min") else 8
    stamps = opt.get("stamps", False)
    QNT = opt.get("qnt", ""); ONT = opt.get("ont", "sc1")
    ROT = opt.get("rot", True)
    kernel_begin(A, K1)
    A("s_cmp_ge_u32 s2, 256")
    A("s_cbranch_scc1 L1_done")
    A("s_load_dwordx8 s[36:43], s[0:1], 0")
    A("s_load_dwordx2 s[44:45], s[0:1], 56")
    A("s_load_dwordx4 s[80:83], s[0:1], 32")
    A("s_load_dwordx2 s[84:85], s[0:1], 48")
    if opt.get("dbg"): A("s_load_dwordx2 s[96:97], s[0:1], 48")
    if stamps: A("s_memrealtime s[60:61]")
    L = VLANE
    t0, t1, t2, t3, t4, t5, t6, t7 = [VT + i for i in range(8)]
    A(f"v_and_b32 v{L}, 63, v0")
    A(f"v_lshrrev_b32 v{t0}, 6, v0")
    A("s_and_b32 s46, s2, 7")
    A("s_lshr_b32 s47, s2, 3")
    A(f"v_readfirstlane_b32 s{S_W}, v{t0}")
    A("s_and_b32 s48, s46, 1")
    A("s_lshl_b32 s48, s48, 2")
    A("s_and_b32 s49, s47, 3")
    A(f"s_add_u32 s{S_B}, s48, s49")
    A("s_lshr_b32 s48, s46, 1")
    A("s_lshl_b32 s48, s48, 3")
    A("s_lshr_b32 s53, s47, 2")
    A(f"s_add_u32 s{S_H}, s48, s53")
    A("s_lshl_b32 s49, s49, 1")
    A(f"s_add_u32 s{S_ROT}, s49, s53")
    MIX = opt.get("mixrot", 0)
    NR = 9 - MIX
    A(f"s_cmp_ge_u32 s{S_ROT}, {NR}")
    A(f"s_cselect_b32 s49, {NR}, 0")
    A(f"s_sub_u32 s{S_ROT}, s{S_ROT}, s49")
    if MIX:
        A(f"s_cmp_ge_u32 s{S_ROT}, {NR}")
        A(f"s_cselect_b32 s49, {NR}, 0")
        A(f"s_sub_u32 s{S_ROT}, s{S_ROT}, s49")
        A(f"s_add_u32 s53, s{S_ROT}, {MIX}")
        A(f"s_mov_b32 s{S_ROT}, 0")
    if not ROT: A(f"s_mov_b32 s{S_ROT}, 0")
    A(f"s_mov_b32 s4, s{S_ROT}")
    A(f"s_mul_i32 s31, s2, {opt.get('kvmul', 1)}")
    A("s_and_b32 s31, s31, 63")
    A(f"s_lshl_b32 s{S_XB}, s{S_W}, 13")
    A(f"s_lshl_b32 s{S_WB}, s{S_W}, 12")
    A(f"v_lshrrev_b32 v{t0}, 3, v{L}")
    A(f"s_lshl_b32 s46, s{S_W}, 6")
    A(f"v_add_u32 v{t0}, s46, v{t0}")
    A(f"v_mul_u32_u24 v{t0}, 1152, v{t0}")
    A(f"v_and_b32 v{t1}, 7, v{L}")
    A(f"v_lshrrev_b32 v{t2}, 4, v{L}")
    A(f"v_xor_b32 v{t3}, v{t1}, v{t2}")
    A(f"v_lshl_add_u32 v{VXD}, v{t3}, 4, v{t0}")
    A(f"v_xor_b32 v{t3}, 4, v{t3}")
    A(f"v_lshl_add_u32 v{VXD+1}, v{t3}, 4, v{t0}")
    A(f"v_and_b32 v{t1}, 15, v{L}")
    A(f"v_lshlrev_b32 v{t3}, 2, v{t2}")
    A(f"v_xor_b32 v{t3}, v{t1}, v{t3}")
    A(f"s_lshl_b32 s46, s{S_W}, 4")
    A(f"v_add_u32 v{t4}, s46, v{t2}")
    A(f"v_lshlrev_b32 v{t4}, 13, v{t4}")
    A(f"v_lshl_add_u32 v{VWD}, v{t3}, 4, v{t4}")
    A("s_waitcnt lgkmcnt(0)")
    A(f"s_mul_i32 s46, s{S_B}, 276480")
    A(f"s_add_u32 s{SRD_X}, s36, s46")
    A(f"s_addc_u32 s{SRD_X+1}, s37, 0")
    A(f"s_mov_b32 s{SRD_X+2}, 276480")
    A(f"s_mov_b32 s{SRD_X+3}, 0x20000")
    A(f"s_lshl_b32 s46, s{S_H}, 8")
    A(f"s_add_u32 s{SRD_W}, s42, s46")
    A(f"s_addc_u32 s{SRD_W+1}, s43, 0")
    A(f"s_sub_u32 s{SRD_W+2}, {576*8192}, s46")
    A(f"s_mov_b32 s{SRD_W+3}, 0x20000")

    def rest_of_setup():
        A(f"s_lshl_b32 s46, s{S_B}, 5")
        A(f"s_add_u32 s46, s46, s{S_H}")
        A(f"s_lshl_b32 s46, s46, 19")
        if opt.get("kvshare"): A("s_mov_b32 s46, 0")
        A(f"s_add_u32 s{SRD_K}, s38, s46")
        A(f"s_addc_u32 s{SRD_K+1}, s39, 0")
        A(f"s_mov_b32 s{SRD_K+2}, 524288")
        A(f"s_mov_b32 s{SRD_K+3}, 0x20000")
        A(f"s_add_u32 s{SRD_V}, s40, s46")
        A(f"s_addc_u32 s{SRD_V+1}, s41, 0")
        A(f"s_mov_b32 s{SRD_V+2}, 524288")
        A(f"s_mov_b32 s{SRD_V+3}, 0x20000")
        A(f"s_mov_b32 s{SRD_O}, s44")
        A(f"s_mov_b32 s{SRD_O+1}, s45")
        A(f"s_mov_b32 s{SRD_O+2}, 0x2A00000")
        A(f"s_mov_b32 s{SRD_O+3}, 0x20000")
        A(f"v_and_b32 v{t0}, 15, v{L}")
        A(f"v_lshrrev_b32 v{t1}, 4, v{L}")
        A(f"v_bfe_u32 v{t2}, v{L}, 2, 2")
        A(f"v_and_b32 v{t3}, 3, v{L}")
        for ks in range(4):
            A(f"v_add_u32 v{t4}, {4*ks}, v{t1}")
            A(f"v_xor_b32 v{t4}, v{t4}, v{t0}")
            A(f"v_lshlrev_b32 v{t4}, 4, v{t4}")
            A(f"v_lshl_add_u32 v{VKR+ks}, v{t0}, 8, v{t4}")
        A(f"v_lshl_add_u32 v{t5}, v{t1}, 2, v{t2}")
        A(f"v_and_b32 v{t6}, 7, v{t5}")
        A(f"v_lshrrev_b32 v{t7}, 1, v{t3}")
        A(f"v_and_b32 v{VT+8}, 1, v{t3}")
        A(f"v_lshlrev_b32 v{VT+8}, 3, v{VT+8}")
        A(f"v_lshl_add_u32 v{VT+8}, v{t5}, 8, v{VT+8}")
        A(f"v_add_u32 v{VT+8}, {VRING}, v{VT+8}")
        for dt in range(8):
            A(f"v_xor_b32 v{t4}, {dt}, v{t6}")
            A(f"v_lshl_add_u32 v{t4}, v{t4}, 1, v{t7}")
            A(f"v_lshl_add_u32 v{VVR+dt}, v{t4}, 4, v{VT+8}")
        A(f"v_bfe_u32 v{t5}, v{t0}, 1, 3")
        A(f"v_lshlrev_b32 v{t6}, 7, v{t0}")
        A(f"v_add_u32 v{t6}, s{S_XB}, v{t6}")
        for s_ in range(2):
            A(f"v_add_u32 v{t4}, {4*s_}, v{t1}")
            A(f"v_xor_b32 v{t4}, v{t4}, v{t5}")
            A(f"v_lshl_add_u32 v{VXR+s_}, v{t4}, 4, v{t6}")
            A(f"v_add_u32 v{VXR+2+s_}, 65536, v{VXR+s_}")
        A(f"v_lshl_add_u32 v{t5}, v{t1}, 3, v{t2}")
        A(f"v_lshlrev_b32 v{t5}, 8, v{t5}")
        A(f"v_add_u32 v{t5}, {WS[0]}, v{t5}")
        for m in range(4):
            A(f"v_xor_b32 v{t4}, {m}, v{t2}")
            A(f"v_lshl_add_u32 v{t4}, v{t4}, 2, v{t3}")
            A(f"v_lshl_add_u32 v{VWR+m}, v{t4}, 4, v{t5}")
        for b in range(4):
            A(f"v_add_u32 v{t4}, {4*b}, v{t1}")
            A(f"v_xor_b32 v{t4}, v{t4}, v{t0}")
            A(f"v_lshlrev_b32 v{t4}, 4, v{t4}")
            A(f"v_lshl_add_u32 v{VKD+b}, v{t1}, 8, v{t4}")
        for b in range(2):
            A(f"v_add_u32 v{t4}, {4*b}, v{t1}")
            A(f"v_lshlrev_b32 v{t4}, 1, v{t4}")
            A(f"v_xor_b32 v{t4}, v{t4}, v{t0}")
            A(f"v_lshlrev_b32 v{t4}, 4, v{t4}")
            A(f"v_lshl_add_u32 v{VVD+b}, v{t1}, 8, v{t4}")

    def dma_chunk(c, nj):
        st = c % 3
        ops = []
        first = [f"s_lshl_b32 s{S_XO}, s{S_ROT}, 7", f"s_lshl_b32 s{S_WO}, s{S_ROT}, 19"]
        for p in range(2*nj):
            ops.append(((first if p == 0 else []) + [f"s_add_u32 m0, s{S_XB}, {XS[st] + p*1024}", f"s_add_u32 s46, s{S_XO}, {p*9216}"],
                        f"buffer_load_dwordx4 v{VXD + (p & 1)}, s[{SRD_X}:{SRD_X+3}], s46 offen {QNT} lds", ("c", c)))
        for p in range(4):
            adv = [f"s_add_u32 s{S_ROT}, s{S_ROT}, 1", f"s_cmp_eq_u32 s{S_ROT}, 9", f"s_cselect_b32 s{S_ROT}, {MIX}, s{S_ROT}"] if p == 0 else []
            if MIX and p == 0 and c < MIX: adv = [f"s_mov_b32 s{S_ROT}, {c+1}"] if c + 1 < MIX else [f"s_mov_b32 s{S_ROT}, s53"]
            ops.append((adv + [f"s_add_u32 m0, s{S_WB}, {WS[st] + p*1024}", f"s_add_u32 s46, s{S_WO}, {p*32768}"],
                        f"buffer_load_dwordx4 v{VWD}, s[{SRD_W}:{SRD_W+3}], s46 offen {QNT} lds", ("c", c)))
        return ops
    EK = opt.get("ek", False)
    XS2 = [32768, 81920]
    def dma_x(c, nj):
        ops = []
        for p in range(2*nj):
            pre = ["s_lshl_b32 s5, s4, 7"] if p == 0 else []
            if p == 1: pre = ["s_add_u32 s4, s4, 1", "s_cmp_eq_u32 s4, 9", "s_cselect_b32 s4, 0, s4"]
            ops.append((pre + [f"s_add_u32 m0, s{S_XB}, {XS2[c & 1] + p*1024}", f"s_add_u32 s46, s5, {p*9216}"],
                        f"buffer_load_dwordx4 v{VXD + (p & 1)}, s[{SRD_X}:{SRD_X+3}], s46 offen {QNT} lds", ("x", c)))
        return ops
    def dma_w(c):
        ops = []
        for p in range(4):
            pre = [f"s_lshl_b32 s{S_WO}, s{S_ROT}, 19"] if p == 0 else []
            if p == 1: pre = [f"s_add_u32 s{S_ROT}, s{S_ROT}, 1", f"s_cmp_eq_u32 s{S_ROT}, 9", f"s_cselect_b32 s{S_ROT}, 0, s{S_ROT}"]
            ops.append((pre + [f"s_add_u32 m0, s{S_WB}, {WS[c % 3] + p*1024}", f"s_add_u32 s46, s{S_WO}, {p*32768}"],
                        f"buffer_load_dwordx4 v{VWD}, s[{SRD_W}:{SRD_W+3}], s46 offen {QNT} lds", ("w", c)))
        return ops
    KVROT = opt.get("kvrot", True)
    S_T0 = 57
    def dma_tile(kind, t, dyn, ldsbase=None):
        srd = SRD_K if kind == "k" else SRD_V
        base = ((KRING if kind == "k" else VRING) + (t % 8)*8192) if ldsbase is None else ldsbase
        ops = []
        for a_ in range(2):
            for b in range(4):
                pre = []
                if b == 0:
                    if not KVROT:
                        if dyn is None: pre = [f"s_mov_b32 s47, {t*8192 + a_*4096}"]
                        elif a_ == 0: pre = [f"s_add_u32 {dyn}, {dyn}, 8192", f"s_mov_b32 s47, {dyn}"]
                        else: pre = [f"s_add_u32 s47, {dyn}, 4096"]
                    elif a_ == 1:
                        pre = ["s_add_u32 s47, s47, 4096"]
                    elif dyn is None:
                        pre = [f"s_add_u32 s47, s31, {t}", "s_and_b32 s47, s47, 63", "s_lshl_b32 s47, s47, 13"]
                    else:
                        pre = [f"s_add_u32 {dyn}, {dyn}, 1", f"s_add_u32 s47, s31, {dyn}", "s_and_b32 s47, s47, 63", "s_lshl_b32 s47, s47, 13",
                               f"s_cmp_lt_u32 {dyn}, 64", "s_cselect_b32 s47, s47, 0x7ff00000"]
                    pre.append(f"s_mov_b32 m0, {base + a_*4096}")
                vo = VKD + b if kind == "k" else VVD + (b & 1)
                off = f" offset:{b*1024}" if b else ""
                ops.append((pre, f"buffer_load_dwordx4 v{vo}, s[{srd}:{srd+3}], s47 offen{off} {NT} lds", (kind, t)))
        return ops

    def emit_dma(vm, ops):
        for pre_, ld, tag in ops:
            for x in pre_: A(x)
            if pre_ and "m0" in pre_[-1]: A("s_nop 0")
            A(ld); vm.issue(tag)

    def p2_setup():
        t0, t1, t2, t3 = VT+8, VT+9, VT+10, VT+11
        A("s_lshr_b32 s47, s2, 3")
        A(f"s_min_u32 s{S2_R}, s47, 29")
        A(f"s_mul_i32 s48, s{S2_R}, 43")
        A("s_lshr_b32 s48, s48, 8")
        A("s_mul_i32 s49, s48, 6")
        A(f"s_sub_u32 s{S2_NT}, s{S2_R}, s49")
        A("s_and_b32 s46, s2, 7")
        A(f"s_lshr_b32 s{S2_KQ}, s46, 1")
        A("s_and_b32 s46, s46, 1")
        A("s_mul_i32 s49, s46, 5")
        A("s_add_u32 s49, s49, s48")
        A(f"s_mul_i32 s{S2_GRP}, s49, 6")
        A(f"s_add_u32 s{S2_GRP}, s{S2_GRP}, s{S2_NT}")
        A(f"s_mul_i32 s{S2_T16}, s49, 12")
        A(f"s_add_u32 s{S2_CW}, s{S2_NT}, s48")
        A(f"s_mul_i32 s{S2_CW}, s{S2_CW}, 3")
        A(f"s_and_b32 s{S2_CW}, s{S2_CW}, 15")
        A(f"s_mov_b32 s{S2_CO}, s{S2_CW}")
        A("s_mov_b32 s94, s48")
        A(f"s_mul_i32 s46, s{S_W}, 3")
        A(f"s_add_u32 s46, s46, s{S2_T16}")
        A("s_lshl_b32 s46, s46, 17")
        A(f"s_lshl_b32 s47, s{S2_KQ}, 15")
        A("s_add_u32 s46, s46, s47")
        A(f"s_add_u32 s{SRD_X}, s44, s46")
        A(f"s_addc_u32 s{SRD_X+1}, s45, 0")
        A(f"s_sub_u32 s{SRD_X+2}, {120*131072}, s46")
        A(f"s_mov_b32 s{SRD_X+3}, 0x20000")
        A(f"s_mul_i32 s46, s{S2_KQ}, 1179648")
        A(f"s_mul_i32 s47, s{S2_NT}, 192")
        A("s_add_u32 s46, s46, s47")
        A(f"s_add_u32 s{SRD_WO}, s80, s46")
        A(f"s_addc_u32 s{SRD_WO+1}, s81, 0")
        A(f"s_sub_u32 s{SRD_WO+2}, {4096*1152}, s46")
        A(f"s_mov_b32 s{SRD_WO+3}, 0x20000")
        A(f"s_mov_b32 s{SRD_W}, s82")
        A(f"s_mov_b32 s{SRD_W+1}, s83")
        A(f"s_mov_b32 s{SRD_W+2}, {1920*1152}")
        A(f"s_mov_b32 s{SRD_W+3}, 0x20000")
        A(f"s_mul_i32 s95, s{S_W}, 3072")
        A(f"v_lshlrev_b32 v{P2_BO}, 4, v{L}")
        A(f"s_mul_i32 s46, s{S_W}, 192")
        A("s_mov_b32 s47, 43691")
        for i in range(3):
            A(f"v_add_u32 v{t0}, s46, v{L}")
            if i: A(f"v_add_u32 v{t0}, {64*i}, v{t0}")
            A(f"v_mul_lo_u32 v{t1}, v{t0}, s47")
            A(f"v_lshrrev_b32 v{t1}, 19, v{t1}")
            A(f"v_mul_u32_u24 v{t2}, 12, v{t1}")
            A(f"v_sub_u32 v{t2}, v{t0}, v{t2}")
            A(f"v_bfe_u32 v{t3}, v{t1}, 2, 1")
            A(f"v_lshlrev_b32 v{t3}, 1, v{t3}")
            A(f"v_xor_b32 v{t2}, v{t2}, v{t3}")
            A(f"v_mul_u32_u24 v{t1}, 1152, v{t1}")
            A(f"v_lshl_add_u32 v{P2_WD+i}, v{t2}, 4, v{t1}")
        A(f"v_lshrrev_b32 v{t0}, 4, v{L}")
        A(f"v_bfe_u32 v{t1}, v{L}, 2, 2")
        A(f"v_lshl_add_u32 v{t1}, v{t0}, 2, v{t1}")
        A(f"v_mul_u32_u24 v{t1}, 192, v{t1}")
        A(f"v_and_b32 v{t2}, 1, v{L}")
        A(f"v_lshl_add_u32 v{t1}, v{t2}, 3, v{t1}")
        A(f"v_bfe_u32 v{t2}, v{L}, 1, 1")
        A(f"v_lshl_add_u32 v{t1}, v{t2}, 4, v{t1}")
        A(f"v_and_b32 v{t0}, 1, v{t0}")
        for b in range(2):
            A(f"v_xor_b32 v{t2}, {b}, v{t0}")
            A(f"v_lshl_add_u32 v{P2_AR+b}, v{t2}, 5, v{t1}")
            A(f"v_add_u32 v{P2_AR+2+b}, 65536, v{P2_AR+b}")
        A("s_mov_b32 s76, s84"); A("s_mov_b32 s77, s85"); A("s_mov_b32 s78, 256"); A("s_mov_b32 s79, 0x20000")
        A(f"v_mov_b32 v{t0}, 0")
        A("s_nop 0")
        A("s_nop 0")
        A(f"buffer_load_dword v{P2_NON}, v{t0}, s[76:79], 0 offen sc1")

    def wo_loads(c):
        ops = []
        for i in range(3):
            pre = [f"s_mul_i32 s42, s{S2_CW}, 73728"] if i == 0 else []
            if i == 2: pre = [f"s_add_u32 s{S2_CW}, s{S2_CW}, 1", f"s_and_b32 s{S2_CW}, s{S2_CW}, 15"]
            pre = pre + [f"s_add_u32 m0, s95, {(c % NSLOT2)*12288 + i*1024}"]
            ops.append((pre, f"buffer_load_dwordx4 v{P2_WD+i}, s[{SRD_WO}:{SRD_WO+3}], s42 offen lds", ("wo", c)))
        return ops

    def code_warm(vm):
        nl = opt["codewarm"]
        A(f"s_lshr_b32 s46, s2, 3")
        A(f"s_lshl_b32 s46, s46, 2")
        A(f"s_add_u32 s46, s46, s{S_W}")
        A(f"s_mul_i32 s46, s46, {nl*128}")
        A(f"v_lshlrev_b32 v{VT+12}, 7, v{L}")
        A(f"v_add_u32 v{VT+12}, s46, v{VT+12}")
        A(f"v_min_u32 v{VT+12}, L1_done-L1_pc, v{VT+12}")
        A(f"v_mov_b32 v{VT+15}, s59")
        A(f"v_add_co_u32 v{VT+14}, vcc, s58, v{VT+12}")
        A("s_nop 1")
        A(f"v_addc_co_u32 v{VT+15}, vcc, 0, v{VT+15}, vcc")
        A(f"v_cmp_gt_u32 vcc, {nl}, v{L}")
        A("s_and_saveexec_b64 s[48:49], vcc")
        A(f"global_load_dword v{VT+13}, v[{VT+14}:{VT+15}], off {opt.get('cwflag', '')}")
        A("s_mov_b64 exec, s[48:49]")
        vm.issue(("cw", 0))
    if opt.get("codewarm"):
        A("s_getpc_b64 s[58:59]")
        A.label("L1_pc")
    A(f"s_cmp_eq_u32 s{S_W}, 3")
    A("s_cbranch_scc1 L1_w3")

    def body(nj, sfx):
        loader = (nj == 3)
        NV = 0 if loader else opt.get("nv", 0)
        vm = VmTracker()
        emit_dma(vm, (dma_x(0, nj) + dma_w(0)) if EK else dma_chunk(0, nj))
        rest_of_setup()
        if not loader:
            A(f"s_or_b32 s46, s2, s{S_W}")
            A("s_cmp_lg_u32 s46, 0")
            A("s_cbranch_scc1 L1_nonce0")
            A(f"v_mov_b32 v{P2_NON}, 0")
            A(f"s_mov_b32 s46, {NONCE_OFF}")
            A(f"buffer_load_dword v{P2_NON}, v{P2_NON}, s[{SRD_O}:{SRD_O+3}], s46 offen sc1")
            A.label("L1_nonce0")
        if opt.get("codewarm") and opt.get("cwpos", 1) == 0: code_warm(vm)
        emit_dma(vm, (dma_x(1, nj) + dma_w(1)) if EK else dma_chunk(1, nj))
        if opt.get("codewarm") and opt.get("cwpos", 1) == 1: code_warm(vm)

        MERGE = opt.get("merge", False)
        WF2 = (lambda T: 160 + T*4) if EK else (lambda T: 96 + T*4)
        XFc = lambda cb, s_, j: 64 + cb*32 + (s_*4 + j)*4
        def rd_x(c):
            out = []
            for s_ in range(2):
                for j in range(nj):
                    off = XS2[c & 1] + j*2048
                    reg = VXR + s_
                    if off >= 65536: off -= 65536; reg += 2
                    out.append(f"ds_read_b128 {ar(XFc(c & 1, s_, j))}, v{reg} offset:{off}")
            return out
        def rd_w(n, alt=False):
            c, s_ = n // 2, n % 2
            out = []
            for T in range(8):
                for t in range(2):
                    r = (WF2(T) if alt else WF(n & 1, T)) + 2*t
                    out.append(f"ds_read_b64_tr_b16 a[{r}:{r+1}], v{VWR + (T >> 1)} offset:{(WS[c % 3]-WS[0]) + s_*8192 + t*1024 + 8*(T & 1)}")
            return out
        ctag = lambda c: {("x", c), ("w", c)} if EK else {("c", c)}
        XF2 = lambda j: 212 + j*4
        def rd_step(n, alt=False):
            c, s_ = n // 2, n % 2
            st, buf = c % 3, n & 1
            wf = WF2 if alt else (lambda T: WF(buf, T))
            xf = XF2 if alt else (lambda j: XF(buf, j))
            xs = []
            for j in range(nj):
                off = XS[st] + j*2048
                reg = VXR + s_
                if off >= 65536: off -= 65536; reg += 2
                xs.append(f"ds_read_b128 {ar(xf(j))}, v{reg} offset:{off}")
            ws = []
            for T in range(8):
                for t in range(2):
                    r = wf(T) + 2*t
                    ws.append(f"ds_read_b64_tr_b16 a[{r}:{r+1}], v{VWR + (T >> 1)} offset:{(WS[st]-WS[0]) + s_*8192 + t*1024 + 8*(T & 1)}")
            return [xs[0]] + ws[0:2] + xs[1:] + ws[2:]
        A(f"s_waitcnt vmcnt({vm.need(ctag(0))})")
        A("s_barrier")
        if stamps and not loader: A("s_memrealtime s[62:63]")
        if not loader:
            A(f"s_or_b32 s46, s2, s{S_W}")
            A("s_cmp_lg_u32 s46, 0")
            A("s_cbranch_scc1 L1_nonce1")
            A(f"v_add_u32 v{P2_NON}, 1, v{P2_NON}")
            A(f"v_or_b32 v{P2_NON}, 0x80000000, v{P2_NON}")
            A(f"v_mov_b32 v{VT}, 0")
            A("s_mov_b32 s76, s84"); A("s_mov_b32 s77, s85"); A("s_mov_b32 s78, 256"); A("s_mov_b32 s79, 0x20000")
            A(f"s_mov_b32 s46, {NONCE_OFF}")
            A(f"v_cmp_eq_u32 vcc, 0, v{L}")
            A("s_and_saveexec_b64 s[48:49], vcc")
            A(f"buffer_store_dword v{P2_NON}, v{VT}, s[{SRD_O}:{SRD_O+3}], s46 offen sc1")
            A(f"buffer_store_dword v{P2_NON}, v{VT}, s[76:79], 0 offen sc1")
            A("s_mov_b64 exec, s[48:49]")
            A.label("L1_nonce1")
        for x in ((rd_x(0)[:nj] + rd_w(0) + rd_x(0)[nj:]) if EK else rd_step(0)): A(x)
        kvq = []
        if EK:
            pend = [(0, op) for op in dma_x(2, nj) + dma_w(2)]
            if loader:
                for kind, t in (("k", 0), ("k", 1), ("k", 2), ("v", 0), ("k", 3), ("v", 1)): kvq += dma_tile(kind, t, None)
        else:
            pend = [(0, op) for op in dma_chunk(2, nj)]
            if loader:
                pend += [(0, op) for op in dma_tile("k", 0, None)] + [(0, op) for op in dma_tile("k", 1, None)]
        def k_reads(t):
            return [f"ds_read_b128 {ar(KF(kt, ks))}, v{VKR+ks} offset:{KRING + (t % 8)*8192 + kt*4096}" for kt in range(2) for ks in range(4)]
        def v_reads(t):
            return [f"ds_read_b64_tr_b16 a[{VF(dt)+2*tt}:{VF(dt)+2*tt+1}], v{VVR+dt} offset:{(t % 8)*8192 + tt*4096}" for dt in range(8) for tt in range(2)]
        NSTEP = 18
        _sv = A.lines; A.lines = []
        p2_setup()
        p2_ops = [x.strip() for x in A.lines]; A.lines = _sv
        _m = []
        for x in p2_ops:
            if x.startswith("s_addc_u32"): _m[-1] = "s_" + _m[-1][2:] + "\n    " + x
            else: _m.append(x)
        p2_ops = _m
        for a_, b_ in (("s46", "s56"), ("s47", "s57"), ("s48", "s58"), ("s49", "s59")):
            p2_ops = [re.sub(r"\b%s\b" % a_, b_, x) for x in p2_ops]
        for n in range(16 if MERGE else NSTEP):
            c, s_ = n // 2, n % 2
            buf = n & 1
            mf = []
            for T in range(8):
                for j in range(nj):
                    d = QACC(T, j)
                    mf.append(mf16(vr(d), ar(WF(buf, T)), ar(XFc(c & 1, s_, j) if EK else XF(buf, j)), "0" if n == 0 else vr(d)))
            gp = Gaps(mf)
            gp.before[0].append("s_waitcnt lgkmcnt(0)")
            ds = []
            if s_ == 1:
                if c + 1 <= 8: gp.before[0].append(f"s_waitcnt vmcnt({vm.need(ctag(c+1))})")
                elif loader: gp.before[0].append(f"s_waitcnt vmcnt({vm.need({('k', 0), ('k', 1)})})")
                if opt.get("qstamps") and not loader: gp.before[0].append(f"s_memtime s[{74+2*c}:{75+2*c}]") if False else None
                gp.before[0].append("s_barrier")
                if opt.get("qstamps") and not loader: gp.before[0].append(f"s_memtime s[{74+2*c}:{75+2*c}]")
                if EK:
                    if c + 3 <= 8: pend += [(n, op) for op in dma_w(c + 3)]
                    if loader and c == 7: kvq += [op for t in range(2, LV) for op in dma_tile("v", t, None)]
                elif c + 3 <= 8: pend += [(n, op) for op in dma_chunk(c + 3, nj)]
                if loader and not EK:
                    if c == 6: pend += [(n, op) for t in range(2, min(6, KPRE)) for op in dma_tile("k", t, None)]
                    if c == 7: pend += [(n, op) for t in (0, 1) for op in dma_tile("v", t, None)] + [(n, op) for t in range(6, KPRE) for op in dma_tile("k", t, None)]
                    if c == 8: pend += [(n, op) for t in range(2, LV) for op in dma_tile("v", t, None)]
            if EK and s_ == 0 and c >= 1 and c + 2 <= 8:
                pend += [(n, op) for op in dma_x(c + 2, nj)]
            if EK:
                assert MERGE
                rd = rd_w(n + 1)
                if s_ == 1: rd = rd_x(c + 1)[:nj] + rd[:2] + rd_x(c + 1)[nj:] + rd[2:]
                if n == 15: rd = rd + rd_w(17, alt=True)
            else:
                if n + 1 < NSTEP: rd = rd_step(n + 1)
                else: rd = k_reads(0)
                if MERGE and n == 15: rd = rd + rd_step(17, alt=True)
            for x in rd: ds.append((0, [], x))
            G = gp.G
            span = G - (opt.get("qrd_margin", 6) if not (MERGE and n == 15) else 3)
            for i_, (_, _, x) in enumerate(ds): gp.vec[(i_ * span) // len(ds)].append(x)
            maxd = opt.get("qdma", 6) if not loader else opt.get("qdma3", 10)
            if EK and loader:
                nchunk = min(len([1 for e_, o_ in pend if e_ <= n]), 6)
                quota = opt.get("kvq_even", 4) if s_ == 0 else opt.get("kvq_odd", 4)
                assert quota % 4 == 0
                sel = pend[:nchunk] + [(n, op) for op in kvq[:quota]]
                kvq = kvq[quota:]
                pend = sel + pend[nchunk:]
                maxd = max(1, len(sel))
            k_ = 0
            while pend and k_ < maxd and pend[0][0] <= n:
                _, (pre_, ld, tag) = pend.pop(0)
                g = 2 + (k_ * (G - 2)) // maxd
                lo = 0 if k_ == 0 else (2 + ((k_ - 1) * (G - 2)) // maxd) + 1
                free = list(range(lo, g + 1))
                pr = list(pre_)
                if len(pr) <= len(free):
                    for x_, gg in zip(pr, free[len(free) - len(pr):]): gp.sc[gg].append(x_)
                else:
                    extra_ = len(pr) - len(free)
                    gp.sc[free[0]] += pr[:extra_ + 1]
                    for x_, gg in zip(pr[extra_ + 1:], free[1:]): gp.sc[gg].append(x_)
                if pre_ and "m0" in pre_[-1]: gp.sc[g].append("s_nop 0")
                gp.vec[g].append(ld); vm.issue(tag)
                k_ += 1
            if opt.get("p2fold", True) and 14 <= n <= 16:
                k_take = -(-len(p2_ops) // (17 - n))
                if MERGE: k_take = (len(p2_ops) * 6) // 10 if n == 14 else len(p2_ops) // 3
                chunk_, p2_ops = p2_ops[:k_take], p2_ops[k_take:]
                for i_, x in enumerate(chunk_): gp.vec[(i_ * G) // len(chunk_)].append(x)
            gp.emit(A)
        conv = []
        if MERGE:
            mf, pos = [], {}
            for j in range(nj):
                for T in range(8):
                    d = QACC(T, j)
                    mf.append(mf16(vr(d), ar(WF(0, T)), ar(XFc(0, 0, j) if EK else XF(0, j)), vr(d)))
                    mf.append(mf16(vr(d), ar(WF2(T)), ar(XFc(0, 1, j) if EK else XF2(j)), vr(d)))
                    pos[(T, j)] = len(mf) - 1
            gp = Gaps(mf)
            G = gp.G
            gp.before[0] += ["s_waitcnt lgkmcnt(0)", f"s_mov_b32 s53, {hex(f2u(SCALE))}"]
            if loader: gp.before[0].append(f"s_waitcnt vmcnt({vm.need({('k', 0), ('k', 1)})})")
            gp.before[0].append("s_barrier")
            if loader and not EK: pend += [(16, op) for t in range(2, LV) for op in dma_tile("v", t, None)]
            if loader and EK: pend += [(16, op) for op in kvq] + [(16, op) for t in range(4, KPRE) for op in dma_tile("k", t, None)]; kvq = []
            for i_, x in enumerate(k_reads(0)): gp.vec[i_].append(x)
            npend = len(pend)
            print("merged block: pending DMA ops", npend, "gaps", G) if opt.get("verbose") else None
            for k_ in range(npend):
                _, (pre_, ld, tag) = pend.pop(0)
                g = 3 + (k_ * (G - 4)) // max(1, npend)
                if any(x.startswith("buffer_load") for x in gp.vec[g]):
                    gp.vec[g] += pre_ + ["s_nop 0", ld]
                else:
                    gp.sc[g] += pre_ + (["s_nop 0"] if pre_ and "m0" in pre_[-1] else [])
                    gp.vec[g].append(ld)
                vm.issue(tag)
            for i_, x in enumerate(p2_ops): gp.vec[(i_ * 12) // max(1, len(p2_ops))].append(x)
            p2_ops = []
            for j in range(nj):
                for m in range(4):
                    rdy = pos[(2*m + 1, j)] + 9
                    for e_ in range(2):
                        d = QACC(2*m + e_, j)
                        for k in range(4): conv.append((rdy, j, f"v_mul_f32 v{d+k}, s53, v{d+k}"))
                    for e_ in range(2):
                        d = QACC(2*m + e_, j)
                        conv.append((rdy, j, f"v_cvt_pk_bf16_f32 v{QF(j, m) + 2*e_}, v{d}, v{d+1}"))
                        conv.append((rdy, j, f"v_cvt_pk_bf16_f32 v{QF(j, m) + 2*e_ + 1}, v{d+2}, v{d+3}"))
            for g in range(G):
                n_ = len(gp.vec[g])
                while conv and n_ < opt.get("convslots", 2) and conv[0][0] <= g:
                    gp.vec[g].append(conv.pop(0)[2]); n_ += 1
            gp.emit(A)
            if stamps and not loader: A("s_memrealtime s[64:65]")
            gap_start = len(A.lines)
        else:
            if stamps and not loader: A("s_memrealtime s[64:65]")
            emit_dma(vm, [op for _, op in pend]); pend = []
            gap_start = len(A.lines)
            A(f"s_mov_b32 s46, {hex(f2u(SCALE))}")
            A("s_mov_b32 s47, s46")
            A("s_nop 4")
            for m in range(4):
                for j in range(nj):
                    for e_ in range(2):
                        d = QACC(2*m + e_, j)
                        A(f"v_pk_mul_f32 v[{d}:{d+1}], v[{d}:{d+1}], s[46:47]")
                        A(f"v_pk_mul_f32 v[{d+2}:{d+3}], v[{d+2}:{d+3}], s[46:47]")
                    for e_ in range(2):
                        d = QACC(2*m + e_, j)
                        A(f"v_cvt_pk_bf16_f32 v{QF(j, m) + 2*e_}, v{d}, v{d+1}")
                        A(f"v_cvt_pk_bf16_f32 v{QF(j, m) + 2*e_ + 1}, v{d+2}, v{d+3}")
        def qk_mfmas(e, first_c):
            mf = []
            for kt in range(2):
                if opt.get("qkord", "chain") == "chain":
                    order = [(j, ks) for j in range(nj) for ks in range(4)]
                else:
                    order = [(j, ks) for ks in range(4) for j in range(nj)]
                for j, ks in order:
                    d = SB(e, j, kt)
                    mf.append(mf16(vr(d), ar(KF(kt, ks)), vr(QF(j, ks)), first_c(j) if ks == 0 else vr(d)))
            return mf
        def pv_mfmas(e, zero_c=False, nv=None, sums_first=False):
            nv = NV if nv is None else nv
            mf = []
            sums = [mf16(ar(LA(j)), ar(ONES), vr(PB(e, j)), "0" if zero_c else ar(LA(j))) for j in range(nv, nj)]
            if sums_first: mf += sums; sums = []
            if opt.get("pvord", "dtj") == "dtj" or sums_first:
                for dt in range(8):
                    for j in range(nj):
                        o = OA(dt, j)
                        mf.append(mf16(ar(o), ar(VF(dt)), vr(PB(e, j)), "0" if zero_c else ar(o)))
                    if dt % 2 == 1 and sums: mf.append(sums.pop(0))
            else:
                for dp in range(4):
                    for j in range(nj):
                        for dt in (2*dp, 2*dp + 1):
                            o = OA(dt, j)
                            mf.append(mf16(ar(o), ar(VF(dt)), vr(PB(e, j)), "0" if zero_c else ar(o)))
                    if sums: mf.append(sums.pop(0))
            return mf + sums
        if MERGE:
            mf = []
            for j in range(nj):
                for kt in range(2):
                    d = SB(0, j, kt)
                    for ks in range(4):
                        mf.append(mf16(vr(d), ar(KF(kt, ks)), vr(QF(j, ks)), "0" if ks == 0 else vr(d)))
            gp = Gaps(mf)
            lead = []
            def alias_gap(op):
                regs = [int(x) for x in re.findall(r"v(\d+)", op)]
                srcs = regs[1:] if op.startswith("v_cvt") else regs
                g_ = 10**9
                for r_ in srcs:
                    if r_ < 32:
                        t_ = r_ // 4
                        if t_ < 2*nj: g_ = min(g_, t_ * 4)
                return g_
            A("s_waitcnt lgkmcnt(0)")
            A(f"v_mov_b32 v{VT}, 0x3f803f80")
            rest = []
            for (rdy, j, op) in conv:
                dl = min(8*j - 3, alias_gap(op) - 1)
                rest.append((dl, op))
            A("s_nop 7")
            k_ = 0
            while k_ < len(rest) and min(d_ for d_, _ in rest[k_:]) < 0:
                A(rest[k_][1]); k_ += 1
            rest = rest[k_:]
            g = 0
            while rest:
                need = min(d_ for d_, _ in rest)
                n_ = 0
                while rest and (n_ < 2 or min(d_ for d_, _ in rest) <= g):
                    assert g < gp.G
                    gp.vec[g].append(rest.pop(0)[1]); n_ += 1
                g += 1
            for i_ in range(4): gp.vec[min(gp.G - 1, g + i_)].append(f"v_accvgpr_write_b32 a{ONES+i_}, v{VT}")
            A("s_nop 1")
            gp.emit(A)
            for x in k_reads(1): A(x)
            A("s_nop 3")
        else:
            A("s_waitcnt lgkmcnt(0)")
            A(f"v_mov_b32 v{VT}, 0x3f803f80")
            mf = qk_mfmas(0, lambda j: "0")
            gp = Gaps(mf)
            k1r = k_reads(1)
            half = len(mf) // 2
            for i_ in range(4): gp.vec[half + i_].append(k1r[i_])
            for i_ in range(4): gp.vec[i_].append(f"v_accvgpr_write_b32 a{ONES+i_}, v{VT}")
            gp.emit(A)
            for i_ in range(4): A(k1r[4 + i_])
            A("s_nop 3")
        if opt.get("fillpart") == "maxonly": gap_start = len(A.lines)
        for j in range(nj):
            a0, a1 = SB(0, j, 0), SB(0, j, 1)
            m_ = VT + j
            A(f"v_max3_f32 v{m_}, v{a0}, v{a0+1}, v{a0+2}")
            A(f"v_max3_f32 v{m_}, v{m_}, v{a0+3}, v{a1}")
            A(f"v_max3_f32 v{m_}, v{m_}, v{a1+1}, v{a1+2}")
            A(f"v_max_f32 v{m_}, v{m_}, v{a1+3}")
        def xlane(op, n=None):
            n = nj if n is None else n
            for swp in ("v_permlane16_swap_b32", "v_permlane32_swap_b32"):
                for j in range(n): A(f"v_mov_b32 v{VT+4+j}, v{VT+j}")
                A("s_nop 1")
                for j in range(n): A(f"{swp} v{VT+j}, v{VT+4+j}")
                A("s_nop 1")
                for j in range(n): A(f"{op} v{VT+j}, v{VT+j}, v{VT+4+j}")
        xlane("v_max_f32")
        for j in range(nj):
            A(f"v_sub_f32 v{VT+j}, 0, v{VT+j}")
        for j in range(nj):
            for i_ in range(4): A(f"v_mov_b32 v{NEGM(j)+i_}, v{VT+j}")
            for kt in range(2):
                for i_ in range(4): A(f"v_add_f32 v{SB(0,j,kt)+i_}, v{SB(0,j,kt)+i_}, v{VT+j}")
        for x in p2_ops: A(x)
        for j in range(NV): A(f"v_mov_b32 v{VL+j}, 0")
        if stamps and opt.get("preb0") and not loader: A("s_memrealtime s[62:63]")
        if loader:
            A(f"s_mov_b32 s{S_KOFF}, {(KPRE-1) if KVROT else (KPRE-1)*8192}")
            A(f"s_mov_b32 s{S_VOFF}, {(LV-1) if KVROT else (LV-1)*8192}")
            A(f"s_waitcnt vmcnt({vm.need({('k', 2), ('k', 3), ('v', 0)} if BAR2 else {('k', 2)})}) lgkmcnt(0)")
        else:
            A("s_waitcnt lgkmcnt(0)")
        if opt.get("fillgap"):
            seg = A.lines[gap_start:]
            out = []
            k_ = 0
            seen_mfma = False
            for ln in seg:
                out.append(ln)
                t_ = ln.strip()
                if t_.startswith("v_mfma"): seen_mfma = True
                if opt.get("fillpart") == "conv" and seen_mfma: continue
                if opt.get("fillpart") == "max" and not seen_mfma: continue
                if t_.startswith("v_") and not t_.startswith("v_mfma") and not t_.startswith("v_readfirstlane") and not t_.startswith("v_cmp"):
                    k_ += 1
                    if k_ % opt["fillgap"] == 0:
                        q_ = (k_ // opt["fillgap"]) % 8
                        out.append(f"    v_mfma_f32_16x16x32_bf16 a[{228+4*(q_%6)}:{231+4*(q_%6)}], a[{q_*4}:{q_*4+3}], a[{64+(q_%4)*4}:{67+(q_%4)*4}], a[{228+4*(q_%6)}:{231+4*(q_%6)}]")
            A.lines[gap_start:] = out
        if opt.get("spinb0"):
            A("s_memrealtime s[74:75]")
            A("s_waitcnt lgkmcnt(0)")
            A(f"s_add_u32 s46, s74, {opt['spinb0']}")
            A.label(f"L1_spin{sfx}")
            A("s_sleep 8")
            A("s_memrealtime s[74:75]")
            A("s_waitcnt lgkmcnt(0)")
            A("s_cmp_lt_u32 s74, s46")
            A(f"s_cbranch_scc1 L1_spin{sfx}")
        A("s_barrier")
        if stamps and not loader:
            A("s_memrealtime s[66:67]")
            A("s_memtime s[40:41]")
        if opt.get("wotouch0", True) and not loader:
            A(f"s_mul_i32 s46, s2, 18432")
            A(f"s_mul_i32 s47, s{S_W}, 6144")
            A("s_add_u32 s46, s46, s47")
            A(f"v_mul_u32_u24 v{VT+12}, 96, v{L}")
            A("s_mov_b32 s56, s80"); A("s_mov_b32 s57, s81"); A(f"s_mov_b32 s58, {4096*1152}"); A("s_mov_b32 s59, 0x20000")
            A(f"buffer_load_dword v{VT+13}, v{VT+12}, s[56:59], s46 offen")
        if opt.get("tlbtouch") and not loader:
            A(f"v_mov_b32 v{VT+12}, 0")
            A(f"s_mul_i32 s46, s{S_B}, 15")
            A(f"s_lshl_b32 s47, s{S_W}, 2")
            A("s_add_u32 s46, s46, s47")
            A("s_lshl_b32 s46, s46, 17")
            A(f"s_lshl_b32 s47, s{S_H}, 12")
            A("s_add_u32 s46, s46, s47")
            A(f"buffer_load_dword v{VT+13}, v{VT+12}, s[{SRD_O}:{SRD_O+3}], s46 offen sc1")
            A(f"s_mul_i32 s46, s2, {FSTRIDE}")
            A(f"s_add_u32 s46, s46, {FLAGO_OFF + opt.get('toff', 2048)}")
            A(f"buffer_load_dword v{VT+13}, v{VT+12}, s[{SRD_O}:{SRD_O+3}], s46 offen sc1")
            A(f"s_mul_i32 s46, s{S2_GRP}, {16*FSTRIDE}")
            A(f"s_add_u32 s46, s46, {FLAGP_OFF + opt.get('toff', 2048)}")
            if opt.get('toff', 2048) == 0:
                A(f"v_and_b32 v{VT+14}, 15, v{L}")
                A(f"v_mul_u32_u24 v{VT+14}, {FSTRIDE}, v{VT+14}")
                A(f"buffer_load_dword v{VT+13}, v{VT+14}, s[{SRD_O}:{SRD_O+3}], s46 offen sc1")
            else:
                A(f"buffer_load_dword v{VT+13}, v{VT+12}, s[{SRD_O}:{SRD_O+3}], s46 offen sc1")
            A("s_lshr_b32 s46, s2, 3")
            A("s_cmp_ge_u32 s46, 30")
            A(f"s_cbranch_scc1 L1_notlb{sfx}")
            A(f"s_add_u32 s47, s{S2_KQ}, 1")
            A("s_and_b32 s47, s47, 3")
            A(f"s_lshl_b32 s46, s{S2_GRP}, 2")
            A("s_add_u32 s46, s46, s47")
            A("s_lshl_b32 s46, s46, 2")
            A(f"s_add_u32 s46, s46, s{S2_KQ}")
            A("s_mul_i32 s46, s46, 18432")
            A(f"s_add_u32 s46, s46, {PART_OFF}")
            A(f"buffer_load_dword v{VT+13}, v{VT+12}, s[{SRD_O}:{SRD_O+3}], s46 offen sc1")
            A(f"s_lshl_b32 s46, s{S2_T16}, 4")
            A(f"s_mul_i32 s47, s{S2_KQ}, 48")
            A("s_add_u32 s46, s46, s47")
            A("s_mul_i32 s46, s46, 1152")
            A(f"s_mul_i32 s47, s{S2_NT}, 192")
            A("s_add_u32 s46, s46, s47")
            A(f"buffer_load_dword v{VT+13}, v{VT+12}, s[{SRD_W}:{SRD_W+3}], s46 offen sc1")
            A.label(f"L1_notlb{sfx}")
        negm = lambda j: vr(NEGM(j))

        def iteration(i, do_qk=True, do_pv=True, zero_c=False, extra_dma=None):
            e = i & 1
            mf = []
            if do_qk: mf += qk_mfmas(e ^ 1, negm)
            nq = len(mf)
            if do_pv: mf += pv_mfmas(e ^ 1, zero_c)
            gp = Gaps(mf)
            est = softmax_stream(e, nj, NV)
            dst = []
            if do_pv and do_qk:
                for x in v_reads(i - 1): dst.append((0, [], x))
            if do_qk:
                kr = k_reads(i + 2)
                for i_ in range(4): dst.append((nq // 2, [], kr[i_]))
                for i_ in range(4): dst.append((nq, [], kr[4 + i_]))
            if loader and do_qk and not (opt.get("nodma") and i >= 2):
                if opt.get("pair"):
                    assert LV == 4 and KPRE == 8
                    if i % 2 == 0: ops = (dma_tile("k", i + 6, f"s{S_KOFF}") + dma_tile("k", i + 7, f"s{S_KOFF}")) if i >= 2 else []
                    else: ops = dma_tile("v", i + 3, f"s{S_VOFF}") + dma_tile("v", i + 4, f"s{S_VOFF}")
                else:
                    ops = (extra_dma or []) + dma_tile("v", i + LV, f"s{S_VOFF}") + (dma_tile("k", i + LK, f"s{S_KOFF}") if i + LK >= KPRE else [])
                merged = []
                if opt.get("dmaspread") and ops:
                    Gn = len(mf)
                    items = [(d_[0], 0, k_, d_) for k_, d_ in enumerate(dst)]
                    dm = [(int(k_ * (Gn - 3) / len(ops)), 1, k_, (int(k_ * (Gn - 3) / len(ops)), o_[0], o_[1])) for k_, o_ in enumerate(ops)]
                    for o_ in ops: vm.issue(o_[2])
                    vpos = 0
                    it2 = []
                    for (e_, _, k_, d_) in items:
                        if "tr_b16" in d_[2]:
                            it2.append((min(vpos, nq - 2), 0, k_, (min(vpos, nq - 2), d_[1], d_[2]))); vpos += 1
                        else:
                            it2.append((e_, 0, k_, d_))
                    allit = sorted(it2 + dm, key=lambda z: (z[0], z[1], z[2]))
                    dst = [z[3] for z in allit]
                    ops = []
                nd = len(dst)
                step = max(1, nd) / max(1, len(ops)) if ops else 1
                oi = 0
                for k_, d_ in enumerate(dst):
                    merged.append(d_)
                    while oi < len(ops) and (oi + 1) * step <= k_ + 1:
                        merged.append((d_[0], ops[oi][0], ops[oi][1])); vm.issue(ops[oi][2]); oi += 1
                while oi < len(ops):
                    merged.append((0, ops[oi][0], ops[oi][1])); vm.issue(ops[oi][2]); oi += 1
                dst = merged
            if not do_pv:
                nslots = 3
            else:
                nslots = opt.get("w3slots", 3) if loader else 2
            if opt.get("strict", True) and do_pv and do_qk:
                tail, dtail = fill_strict(gp, softmax_stream0(e, nj, NV), dst, nslots=nslots, lag=opt.get("lag", 1))
            else:
                tail, dtail = fill_gaps(gp, est, dst, nslots=nslots)
            if do_pv and do_qk:
                allorder = [(g, x) for g in range(gp.G) for x in gp.vec[g] if x.startswith("ds_")]
                vpos = [k for k, (g, x) in enumerate(allorder) if "tr_b16" in x]
                assert len(vpos) == 16
                covered = -1
                for dt in range(8):
                    gm = next(k for k, m in enumerate(mf) if k >= nq and ar(VF(dt)) in m)
                    need_pos = vpos[2*dt + 1]
                    if need_pos <= covered: continue
                    issued_before = [k for k, (g, x) in enumerate(allorder) if g < gm - 1]
                    if issued_before and issued_before[-1] >= need_pos:
                        tgt = max([need_pos] + [p for p in vpos if allorder[p][0] <= gm - 7])
                        n_ = issued_before[-1] - tgt
                        gp.sc[gm - 1].append(f"s_waitcnt lgkmcnt({min(15, n_)})")
                        covered = tgt if n_ <= 15 else issued_before[-1] - 15
                        assert covered >= need_pos
                    else:
                        issued_before = [k for k, (g, x) in enumerate(allorder) if g < gm]
                        assert issued_before[-1] >= need_pos, (i, dt, gm)
                        n_ = issued_before[-1] - need_pos
                        gp.before[gm].append(f"s_waitcnt lgkmcnt({min(15, n_)})")
                        covered = need_pos
            gp.emit(A)
            if tail: A("s_nop 0")
            for x in tail: A(x)
            for e_, pre_, txt in dtail:
                for x in pre_: A(x)
                if pre_ and "m0" in pre_[-1]: A("s_nop 0")
                A(txt)
        def end_wait(i):
            if not loader: return "s_waitcnt lgkmcnt(0)"
            if opt.get("nodma"): return 63
            if BAR2:
                if i % 2 == 0: return None
                tags = {("v", i), ("v", i + 1)} | {("k", t) for t in (i + 3, i + 4) if t <= 63}
                return vm.need(tags)
            tags = {("v", i)}
            if i + 3 <= 63: tags.add(("k", i + 3))
            return vm.need(tags)
        def end_iter(i, w):
            bar = (not BAR2) or (i % 2 == 1)
            if loader and bar: A(f"s_waitcnt vmcnt({min(w, opt.get('vmcap', 63))}) lgkmcnt(0)")
            else: A("s_waitcnt lgkmcnt(0)")
            return bar
        extra = None
        if loader and LK > 8:
            extra = []
            for t in range(8, LK): extra += dma_tile("k", t, f"s{S_KOFF}")
        iteration(0, do_pv=False, extra_dma=extra)
        if end_iter(0, end_wait(0)): A("s_barrier")
        iteration(1, zero_c=True)
        if end_iter(1, end_wait(1)): A("s_barrier")
        A(f"s_mov_b32 s{S_GRP}, 0")
        if stamps and opt.get("preb0") == 2 and not loader: A("s_memrealtime s[62:63]")
        A(f"s_branch L1_pos2{sfx}")
        npos = {}
        if loader:
            save_q, save_lines = list(vm.q), A.lines
            A.lines = []
            ns = {}
            for i in range(2, 63):
                iteration(i); ns[i] = end_wait(i)
            A.lines = save_lines
            npos = {p: min([ns[i] for i in range(2, 63) if i % 8 == p and ns[i] is not None] or [0]) for p in range(8)}
            vm.q = save_q
        A(".p2align 6")
        for p in range(8):
            A.label(f"L1_pos{p}{sfx}")
            iteration(8 + p)
            bar = end_iter(p, npos.get(p))
            if opt.get("istamps") and not loader:
                A("s_memrealtime s[74:75]")
                A(f"s_lshl_b32 s46, s{S_GRP}, 3")
                A(f"s_add_u32 m0, s46, {p}")
                A("s_waitcnt lgkmcnt(0)")
                A(f"v_writelane_b32 v242, s74, m0")
            if p == 6:
                A(f"s_cmp_eq_u32 s{S_GRP}, 7")
                if bar: A("s_barrier")
                A(f"s_cbranch_scc1 L1_tail{sfx}")
            elif p == 7:
                A(f"s_add_u32 s{S_GRP}, s{S_GRP}, 1")
                if opt.get("wotouch") and not loader:
                    A(f"s_cmp_lg_u32 s{S_GRP}, {opt.get('touchgrp', 7)}")
                    A(f"s_cbranch_scc1 L1_notouch{sfx}")
                    A("s_mul_i32 s46, s94, 205")
                    A(f"s_mul_i32 s47, s{S_W}, 69")
                    A("s_add_u32 s46, s46, s47")
                    A(f"v_lshrrev_b32 v{VT+12}, 1, v{L}")
                    A(f"v_add_u32 v{VT+12}, s46, v{VT+12}")
                    A(f"v_mul_u32_u24 v{VT+12}, 1152, v{VT+12}")
                    A(f"v_and_b32 v{VT+13}, 1, v{L}")
                    A(f"v_lshl_add_u32 v{VT+12}, v{VT+13}, 7, v{VT+12}")
                    for k_ in range(3):
                        A(f"s_mov_b32 s47, {k_*32*1152 if k_ < 2 else 37*1152}")
                        A(f"buffer_load_dword v{VT+13}, v{VT+12}, s[{SRD_WO}:{SRD_WO+3}], s47 offen")
                    A.label(f"L1_notouch{sfx}")
                if opt.get("gstamps") and not loader:
                    A("s_memrealtime s[74:75]")
                    A("s_memtime s[76:77]")
                    A("s_waitcnt lgkmcnt(0)")
                    A(f"s_mov_b32 m0, s{S_GRP}")
                    A("s_nop 0")
                    A(f"v_writelane_b32 v{VT+20}, s74, m0")
                    A(f"v_writelane_b32 v{VT+21}, s76, m0")
                A("s_barrier")
                A(f"s_branch L1_pos0{sfx}")
            else:
                if bar: A("s_barrier")
        A.label(f"L1_tail{sfx}")
        if stamps and not loader:
            A("s_memrealtime s[68:69]")
            A("s_memtime s[38:39]")
        e = 1
        for x in v_reads(62): A(x)
        est = softmax_stream(e, nj, NV)
        TE = opt.get("tailexp", 6)
        lead_ops, est = est[:TE], est[TE:]
        for k__, x in lead_ops: A(x)
        mf = pv_mfmas(e ^ 1)
        gp = Gaps(mf)
        gp.before[0].append("s_waitcnt lgkmcnt(0)")
        vr63 = v_reads(63)
        wo_pend = []
        dst = []
        first_g = None
        for dt in range(8):
            gm = max(k for k, m in enumerate(mf) if ar(VF(dt)) in m)
            g_ = gm + 1 if gm + 1 < len(mf) else gm
            first_g = g_ if first_g is None else min(first_g, g_)
            dst += [(g_, [], x) for x in vr63[2*dt:2*dt+2]]
        dst.sort(key=lambda z: z[0])
        if loader: gp.before[1].append("s_waitcnt vmcnt(0)")
        gp.before[1].append("s_barrier")
        assert first_g >= 1
        tail, dtail = fill_gaps(gp, est, dst, nslots=3)
        gp.emit(A)
        if tail: A("s_nop 0")
        for x in tail: A(x)
        for e_, pre_, txt in dtail: A(txt)
        A("s_waitcnt lgkmcnt(0)")
        A("s_barrier")
        assert NV == 0
        gp = Gaps(pv_mfmas(e, sums_first=True))
        MASKS = [48, 50, 52, 56]
        norm_scalars = [f"s_mul_i32 s46, s{S_B}, 15", f"s_lshl_b32 s47, s{S_W}, 2", "s_add_u32 s46, s46, s47", "s_lshl_b32 s46, s46, 17",
                        f"s_lshl_b32 s47, s{S_H}, 12", "s_add_u32 s46, s46, s47"]
        for i_, x in enumerate(norm_scalars): gp.sc[i_].append(x)
        gp.sc[6].append(f"s_mov_b32 s55, {hex(f2u(2.0**40))}")
        gp.vec[1].append(f"v_lshlrev_b32 v{VT+8}, 4, v{L}")
        g0 = nj + 9
        for j in range(nj): gp.vec[g0 + j // 2].append(f"v_accvgpr_read_b32 v{VT+j}, a{LA(j)}")
        for j in range(nj): gp.vec[g0 + 3 + j // 2].append(f"v_cmp_ngt_f32 s[{MASKS[j]}:{MASKS[j]+1}], s55, v{VT+j}")
        for j in range(nj): gp.vec[g0 + 6 + j].append(f"v_rcp_f32 v{VT+4+j}, v{VT+j}")
        gp.emit(A)
        for j in range(1, nj): A(f"s_or_b64 s[48:49], s[48:49], s[{MASKS[j]}:{MASKS[j]+1}]")
        A("s_cmp_eq_u64 s[48:49], 0")
        A(f"s_cbranch_scc0 L1_slow{sfx}")
        A.label(f"L1_norm{sfx}")
        A("s_nop 3")
        k_ = 0
        for j in range(nj):
            A(f"s_add_u32 s47, s46, {j*131072}")
            for m in range(4):
                base = (k_ % 6) * 12; k_ += 1
                for e_ in range(2):
                    o = OA(2*m + e_, j)
                    for i_ in range(4): A(f"v_accvgpr_read_b32 v{base+4*e_+i_}, a{o+i_}")
                for i_ in range(0, 8, 2):
                    A(f"v_pk_mul_f32 v[{base+i_}:{base+i_+1}], v[{base+i_}:{base+i_+1}], v[{VT+4+j-((VT+4+j)%2)}:{VT+5+j-((VT+4+j)%2)}] op_sel:[0,{(VT+4+j)%2}] op_sel_hi:[1,{(VT+4+j)%2}]")
                for i_ in range(4):
                    A(f"v_cvt_pk_bf16_f32 v{base+8+i_}, v{base+2*i_}, v{base+2*i_+1}")
                A(f"buffer_store_dwordx4 v[{base+8}:{base+11}], v{VT+8}, s[{SRD_O}:{SRD_O+3}], s47 offen offset:{m*1024} {ONT}")
        if stamps and not loader: A("s_memrealtime s[70:71]")
        A("s_branch L2_entry")

        A.label(f"L1_slow{sfx}")
        A(f"s_lshl_b32 s52, s{S_W}, 14")
        A("s_add_u32 s52, s52, 98304")
        for ks in range(4): A(f"v_add_u32 v{VKR+ks}, s52, v{VKR+ks}")
        A(f"s_sub_u32 s55, s52, {VRING - 8192}")
        for dt in range(8): A(f"v_add_u32 v{VVR+dt}, s55, v{VVR+dt}")
        def slow_tile(kind):
            srd = SRD_K if kind == "k" else SRD_V
            for a_ in range(2):
                A(f"s_add_u32 s54, s53, {a_*4096}")
                A(f"s_add_u32 m0, s52, {(0 if kind == 'k' else 8192) + a_*4096}")
                A("s_nop 0")
                for b in range(4):
                    vo = VKD + b if kind == "k" else VVD + (b & 1)
                    off = f" offset:{b*1024}" if b else ""
                    A(f"buffer_load_dwordx4 v{vo}, s[{srd}:{srd+3}], s54 offen{off} lds")
        for j in range(nj): A(f"v_mov_b32 v{VT+j}, 0xff800000")
        A("s_mov_b32 s53, 0")
        A.label(f"L1_slow_max{sfx}")
        slow_tile("k")
        A("s_waitcnt vmcnt(0)")
        for x in k_reads(0): A(x)
        A("s_waitcnt lgkmcnt(0)")
        for m in qk_mfmas(0, lambda j: "0"): A(m)
        A("s_nop 7"); A("s_nop 7")
        for j in range(nj):
            for kt in range(2):
                S = SB(0, j, kt)
                A(f"v_max3_f32 v{VT+j}, v{VT+j}, v{S}, v{S+1}")
                A(f"v_max3_f32 v{VT+j}, v{VT+j}, v{S+2}, v{S+3}")
        A("s_add_u32 s53, s53, 8192")
        A("s_cmp_lt_u32 s53, 524288")
        A(f"s_cbranch_scc1 L1_slow_max{sfx}")
        xlane("v_max_f32")
        for j in range(nj):
            A(f"v_sub_f32 v{VT+j}, 0, v{VT+j}")
        for j in range(nj):
            for i_ in range(4): A(f"v_mov_b32 v{NEGM(j)+i_}, v{VT+j}")
        for dt in range(8):
            for j in range(nj):
                for i_ in range(4): A(f"v_accvgpr_write_b32 a{OA(dt,j)+i_}, 0")
        for j in range(nj):
            for i_ in range(4): A(f"v_accvgpr_write_b32 a{LA(j)+i_}, 0")
        A("s_mov_b32 s53, 0")
        A.label(f"L1_slow_main{sfx}")
        slow_tile("k"); slow_tile("v")
        A("s_waitcnt vmcnt(0)")
        for x in k_reads(0): A(x)
        for x in v_reads(0): A(x)
        A("s_waitcnt lgkmcnt(0)")
        for m in qk_mfmas(0, negm): A(m)
        A("s_nop 7"); A("s_nop 7")
        st = softmax_stream(0, nj)
        for k__, x in st:
            if k__ == 'e': A(x)
        A("s_nop 0")
        for k__, x in st:
            if k__ == 'c': A(x)
        A("s_nop 1")
        for m in pv_mfmas(0, nv=0): A(m)
        A("s_add_u32 s53, s53, 8192")
        A("s_cmp_lt_u32 s53, 524288")
        A(f"s_cbranch_scc1 L1_slow_main{sfx}")
        A("s_nop 7"); A("s_nop 7")
        for j in range(nj): A(f"v_accvgpr_read_b32 v{VT+j}, a{LA(j)}")
        A("s_nop 0")
        for j in range(nj): A(f"v_rcp_f32 v{VT+4+j}, v{VT+j}")
        for x in norm_scalars: A(x)
        A(f"v_lshlrev_b32 v{VT+8}, 4, v{L}")
        A(f"s_branch L1_norm{sfx}")

    body(4, "a")
    A(".p2align 6")
    A.label("L1_w3")
    body(3, "b")
    phase2(A, opt, wo_loads)
    A.label("L1_done")
    A("s_endpgm")

def emit_poll(A, name, addr_v, srd, soff, nonce, mask, done_label, regs, depth, sleep):
    for k in range(depth - 1):
        A(f"buffer_load_dword v{regs+k}, v{addr_v}, s[{srd}:{srd+3}], {soff} offen sc1")
        if sleep: A(f"s_sleep {sleep}")
    A("s_mov_b32 s50, 0")
    A.label(name)
    for k in range(depth):
        A(f"buffer_load_dword v{regs + (k + depth - 1) % depth}, v{addr_v}, s[{srd}:{srd+3}], {soff} offen sc1")
        A(f"s_waitcnt vmcnt({depth - 1})")
        A(f"v_cmp_ne_u32 vcc, {nonce}, v{regs + k}")
        A("s_add_u32 s50, s50, 1")
        A("s_nop 3")
        if mask: A(f"s_and_b64 vcc, vcc, {mask}")
        A("s_cmp_eq_u64 vcc, 0")
        A(f"s_cbranch_scc1 {done_label}")
        if sleep: A(f"s_sleep {sleep}")
    A("s_cmp_lt_u32 s50, 0x400000")
    A(f"s_cbranch_scc1 {name}")

def phase2(A, opt, wo_loads):
    stamps = opt.get("stamps", False)
    L = VLANE
    t0, t1, t2, t3 = VT, VT+1, VT+2, VT+3
    SRD_O2, SRD_OUT, SRD_P = SRD_X, SRD_W, SRD_O
    vm = VmTracker()
    A(".p2align 6")
    A.label("L2_entry")
    EARLY = opt.get("early", 0)
    all_pre = [wo_loads(c) for c in range(max(EARLY, opt.get("npre", 2)))]
    for c in range(EARLY):
        for p_, ld, tag in all_pre[c]:
            for x in p_: A(x)
            A("s_nop 0"); A(ld); vm.issue(tag)
    A(f"s_mul_i32 s54, s2, {FSTRIDE}")
    A(f"s_add_u32 s54, s54, {FLAGO_OFF}")
    A("s_mul_i32 s46, s94, 208")
    A("s_lshr_b32 s46, s46, 8")
    A("s_min_u32 s47, s94, 3")
    A(f"v_and_b32 v{t1}, 7, v{L}")
    A(f"v_lshlrev_b32 v{t1}, 2, v{t1}")
    A(f"v_mov_b32 v{t2}, s46")
    A(f"v_mov_b32 v{t3}, s47")
    A(f"v_and_b32 v{VT+4}, 8, v{L}")
    A(f"v_cmp_eq_u32 vcc, 0, v{VT+4}")
    A("s_and_b32 s46, s2, 7")
    A("s_nop 0")
    A(f"v_cndmask_b32 v{t2}, v{t3}, v{t2}, vcc")
    A(f"v_add_u32 v{t1}, v{t1}, v{t2}")
    A(f"v_lshlrev_b32 v{t1}, 3, v{t1}")
    A(f"v_add_u32 v{t1}, s46, v{t1}")
    A(f"v_mul_u32_u24 v{t1}, {FSTRIDE}, v{t1}")
    A(f"v_mov_b32 v{t2}, 0")
    A(f"v_cmp_eq_u32 s[48:49], 0, v{L}")
    A(f"s_waitcnt vmcnt({3*EARLY})")
    A(f"v_readfirstlane_b32 s{S_NONCE}, v{P2_NON}")
    A("s_barrier")
    A(f"s_cmp_lg_u32 s{S_NONCE}, 0")
    A("s_cbranch_scc1 L2_have_nonce")
    A("s_mov_b32 s50, 0")
    A.label("L2_nonce_poll")
    A(f"buffer_load_dword v{P2_NON}, v{t2}, s[76:79], 0 offen sc1")
    A("s_waitcnt vmcnt(0)")
    A(f"v_readfirstlane_b32 s{S_NONCE}, v{P2_NON}")
    A("s_nop 3")
    A("s_add_u32 s50, s50, 1")
    A(f"s_cmp_lg_u32 s{S_NONCE}, 0")
    A("s_cbranch_scc1 L2_have_nonce")
    A("s_cmp_lt_u32 s50, 0x200000")
    A("s_cbranch_scc1 L2_nonce_poll")
    A.label("L2_have_nonce")
    if stamps: A("s_memrealtime s[72:73]")
    A(f"s_cmp_lg_u32 s{S_W}, 0")
    A("s_cbranch_scc1 L2_oflag_done")
    A(f"v_mov_b32 v{t0}, s{S_NONCE}")
    A("s_mov_b64 s[50:51], exec")
    A("s_mov_b64 exec, s[48:49]")
    A(f"buffer_store_dword v{t0}, v{t2}, s[{SRD_P}:{SRD_P+3}], s54 offen {opt.get('oflag', 'sc1')}")
    A("s_mov_b64 exec, s[50:51]")
    A.label("L2_oflag_done")
    A("s_lshr_b32 s46, s2, 3")
    A("s_cmp_ge_u32 s46, 30")
    A("s_cbranch_scc1 L2_exit")
    NPRE = max(EARLY, opt.get("npre", 2))
    pre_ops = [op for c in range(EARLY, NPRE) for op in all_pre[c]]
    for p_, ld, tag in pre_ops:
        for x in p_: A(x)
        A("s_nop 0"); A(ld); vm.issue(tag)
    A(f"s_cmp_lg_u32 s{S_W}, 0")
    A("s_cbranch_scc1 L2_omatched")
    A(f"s_mov_b32 s47, {FLAGO_OFF}")
    emit_poll(A, "L2_opoll", t1, SRD_P, "s47", f"s{S_NONCE}", None, "L2_omatched", VT+5, opt.get("pdepth", 3), opt.get("psleep", 4))
    A.label("L2_omatched")
    A("s_barrier")
    if stamps: A("s_memrealtime s[56:57]")
    def o_loads(c):
        ops = []
        k = 0
        for s_ in range(2):
            for mt in range(3):
                pre = [f"s_lshl_b32 s43, s{S2_CO}, 11"] if k == 0 else []
                pre = pre + [f"s_add_u32 s47, s43, {mt*131072 + s_*1024}"]
                if k == 5: pre += [f"s_add_u32 s{S2_CO}, s{S2_CO}, 1", f"s_and_b32 s{S2_CO}, s{S2_CO}, 15"]
                ops.append((pre, f"buffer_load_dwordx4 {vr(BF2(c % 4, s_, mt))}, v{P2_BO}, s[{SRD_O2}:{SRD_O2+3}], s47 offen {opt.get('old', 'sc1')}", ("o", c)))
                k += 1
        return ops
    def emit(ops):
        for p_, ld, tag in ops:
            for x in p_: A(x)
            if "m0" in p_[-1]: A("s_nop 0")
            A(ld); vm.issue(tag)
    def areads(n):
        c, s_ = n // 2, n % 2
        buf = n & 1
        ops = []
        for nt in range(6):
            for t in range(2):
                r = AF2(buf, nt) + 2*t
                off = (c % NSLOT2)*12288 + s_*6144 + t*3072 + (nt >> 1)*64
                reg = P2_AR + (nt & 1)
                if off >= 65536: off -= 65536; reg += 2
                ops.append(f"ds_read_b64_tr_b16 a[{r}:{r+1}], v{reg} offset:{off}")
        return ops
    emit(o_loads(0)); emit(o_loads(1))
    A(f"s_waitcnt vmcnt({vm.need({('o', 0), ('wo', 0)})})")
    A("s_barrier")
    for x in areads(0): A(x)
    if stamps: A("s_memrealtime s[74:75]")
    pend = []
    later = [wo_loads(c) for c in range(NPRE, NSLOT2)]
    if later: pend += later.pop(0)
    pend += o_loads(2)
    for l_ in later: pend += l_
    for n in range(32):
        c, s_ = n // 2, n % 2
        buf = n & 1
        mf = []
        for nt in range(6):
            for mt in range(3):
                acc = ACC2(mt, nt)
                mf.append(mf16(ar(acc), ar(AF2(buf, nt)), vr(BF2(c % 4, s_, mt)), "0" if n == 0 else ar(acc)))
        gp = Gaps(mf)
        gp.before[0].append("s_waitcnt lgkmcnt(0)")
        if s_ == 1 and c < 15:
            tags = {("o", c + 1)}
            tags.add(("wo", c + 1))
            gp.before[0].append(f"s_waitcnt vmcnt({vm.need(tags)})")
            if c + 1 >= NSLOT2 or c + NSLOT2 <= 15: gp.before[0].append("s_barrier")
            if opt.get("cstamps"):
                gp.before[0] += ["s_memtime s[56:57]", "s_waitcnt lgkmcnt(0)", f"v_writelane_b32 v242, s56, {c}"]
            newo = o_loads(c + 3) if c + 3 <= 15 else []
            k_ins = 0
            while k_ins < len(pend) and (pend[k_ins][2][0] == "o" or pend[k_ins][2][1] <= c + 3): k_ins += 1
            while 0 < k_ins < len(pend) and pend[k_ins][2] == pend[k_ins-1][2]: k_ins += 1
            pend[k_ins:k_ins] = newo
            if c + NSLOT2 <= 15: pend += wo_loads(c + NSLOT2)
        rgaps = opt.get("rgaps", list(range(12)))
        if n + 1 < 32:
            for g, x in zip(rgaps, areads(n + 1)): gp.vec[g].append(x)
        big = len(pend) > 9
        take = min(len(pend), 6 if big else 5)
        lgaps = (2, 5, 8, 11, 14, 17) if big else (2, 5, 8, 11, 14)
        for k_ in range(take):
            p_, ld, tag = pend.pop(0)
            g = lgaps[k_]
            lo = 0 if k_ == 0 else lgaps[k_ - 1] + 1
            free = list(range(lo, g + 1))
            pr = list(p_)
            m0last = "m0" in pr[-1]
            if m0last: free = free[:-1]
            while len(pr) > len(free): gp.sc[free[0]].append(pr.pop(0))
            for x_, gg in zip(pr, free[len(free) - len(pr):]): gp.sc[gg].append(x_)
            gp.vec[g].append(ld); vm.issue(tag)
        gp.emit(A)
    assert not pend
    if stamps: A("s_memrealtime s[76:77]") if False else None
    A(f"s_lshl_b32 s46, s{S2_GRP}, 2")
    VA = VT + 8
    VO = VT + 13
    SO = [42, 43, 44, 45, 94]
    def final_prep():
        A(f"s_add_u32 s47, s46, s{S2_KQ}")
        A("s_lshl_b32 s47, s47, 2")
        for d in range(1, 4):
            A(f"s_add_u32 s48, s{S2_KQ}, {d}")
            A("s_and_b32 s48, s48, 3")
            A("s_add_u32 s48, s48, s47")
            A("s_mul_i32 s48, s48, 18432")
            A(f"s_add_u32 s{55+d}, s48, {PART_OFF}")
        A(f"s_lshl_b32 s45, s{S_W}, 10")
        for i in range(5):
            A(f"v_add_u32 v{VA+i}, s45, v{P2_BO}")
            if i: A(f"v_add_u32 v{VA+i}, {i*4096}, v{VA+i}")
        A(f"v_and_b32 v{VO}, 15, v{L}")
        A(f"v_mul_u32_u24 v{VO}, 1152, v{VO}")
        A(f"v_lshrrev_b32 v{VO+1}, 4, v{L}")
        A(f"v_lshl_add_u32 v{VO}, v{VO+1}, 3, v{VO}")
        A(f"s_lshl_b32 s59, s{S2_T16}, 4")
        A(f"s_mul_i32 s47, s{S2_KQ}, 48")
        A("s_add_u32 s59, s59, s47")
        A("s_mul_i32 s59, s59, 1152")
        A(f"s_mul_i32 s47, s{S2_NT}, 192")
        A("s_add_u32 s59, s59, s47")
        for i in range(5):
            A(f"s_add_u32 s47, s{S_W}, {4*i}")
            A("s_mul_i32 s48, s47, 43")
            A("s_lshr_b32 s48, s48, 8")
            A("s_mul_i32 s49, s48, 6")
            A("s_sub_u32 s49, s47, s49")
            A("s_mul_i32 s48, s48, 18432")
            A("s_lshl_b32 s49, s49, 5")
            A("s_add_u32 s48, s48, s49")
            A(f"s_add_u32 s{SO[i]}, s48, s59")

    A("s_nop 7")
    if stamps: A("s_memrealtime s[100:101]")
    A(f"s_cmp_eq_u32 s{S_W}, s{S2_KQ}")
    A("s_cbranch_scc1 L2_keep")
    A(f"s_add_u32 s48, s46, s{S_W}")
    A("s_lshl_b32 s48, s48, 2")
    A(f"s_add_u32 s48, s48, s{S2_KQ}")
    A("s_mul_i32 s47, s48, 18432")
    A(f"s_add_u32 s47, s47, {PART_OFF}")
    for tl in range(18):
        if tl and tl % 4 == 0: A("s_add_u32 s47, s47, 4096")
        A(f"buffer_store_dwordx4 {ar(48 + tl*4)}, v{P2_BO}, s[{SRD_P}:{SRD_P+3}], s47 offen offset:{(tl % 4)*1024} sc1")
    A(f"s_mul_i32 s55, s48, {FSTRIDE}")
    A(f"s_add_u32 s55, s55, {FLAGP_OFF}")
    final_prep()
    A(f"v_mov_b32 v{t0}, s{S_NONCE}")
    A(f"v_mov_b32 v{t1}, 0")
    A(f"v_cmp_eq_u32 vcc, 0, v{L}")
    A("s_waitcnt vmcnt(0)")
    A("s_and_saveexec_b64 s[50:51], vcc")
    A(f"buffer_store_dword v{t0}, v{t1}, s[{SRD_P}:{SRD_P+3}], s55 offen sc1")
    A("s_mov_b64 exec, s[50:51]")
    A("s_branch L2_polled")
    A.label("L2_keep")
    for tl in range(18):
        A(f"ds_write_b128 v{P2_BO}, {ar(48 + tl*4)} offset:{tl*1024}")
    final_prep()
    A(f"s_add_u32 s47, s46, s{S2_KQ}")
    A(f"s_mul_i32 s47, s47, {4*FSTRIDE}")
    A(f"s_add_u32 s47, s47, {FLAGP_OFF}")
    A(f"v_and_b32 v{t3}, 3, v{L}")
    A(f"v_mul_u32_u24 v{t1}, {FSTRIDE}, v{t3}")
    A(f"v_cmp_ne_u32 s[52:53], s{S2_KQ}, v{t3}")
    emit_poll(A, "L2_poll", t1, SRD_P, "s47", f"s{S_NONCE}", "s[52:53]", "L2_kept", VT+5, opt.get("pdepth", 3), opt.get("psleep", 4))
    A.label("L2_kept")
    A("s_waitcnt lgkmcnt(0)")
    A.label("L2_polled")
    A("s_barrier")
    if stamps: A("s_memrealtime s[78:79]")
    R = lambda i, d: 32 + i*16 + d*4
    def tile_loads(i):
        for d in range(1, 4):
            A(f"buffer_load_dwordx4 {vr(R(i, d))}, v{VA+i}, s[{SRD_P}:{SRD_P+3}], s{55+d} offen sc1")
        A(f"ds_read_b128 {vr(R(i, 0))}, v{VA+i}")
    def tile_fin(i, n_after):
        A(f"s_waitcnt vmcnt({n_after}) lgkmcnt(0)")
        r0 = R(i, 0)
        for k in range(4):
            A(f"v_add_f32 v{r0+k}, v{r0+k}, v{r0+4+k}")
            A(f"v_add_f32 v{r0+8+k}, v{r0+8+k}, v{r0+12+k}")
        for k in range(4):
            A(f"v_add_f32 v{r0+k}, v{r0+k}, v{r0+8+k}")
        A(f"v_cvt_pk_bf16_f32 v{r0+4}, v{r0}, v{r0+1}")
        A(f"v_cvt_pk_bf16_f32 v{r0+5}, v{r0+2}, v{r0+3}")
        A(f"buffer_store_dwordx2 v[{r0+4}:{r0+5}], v{VO}, s[{SRD_OUT}:{SRD_OUT+3}], s{SO[i]} offen {opt.get('outst', '')}")
    A(f"s_cmp_ge_u32 s{S_W}, 2")
    A("s_cbranch_scc1 L2_four")
    for i in range(5): tile_loads(i)
    for i in range(5): tile_fin(i, 3*(4 - i) + i if i < 4 else 4)
    A("s_branch L2_fin")
    A.label("L2_four")
    for i in range(4): tile_loads(i)
    for i in range(4): tile_fin(i, 3*(3 - i) + i)
    A.label("L2_fin")
    if stamps:
        A("s_waitcnt vmcnt(0)")
        A("s_memrealtime s[54:55]")
        A("s_waitcnt lgkmcnt(0)")
        A(f"s_cmp_lg_u32 s{S_W}, 0")
        A("s_cbranch_scc1 L1_done")
        for i_, r in enumerate([60, 62, 64, 66, 68, 70, 72]):
            A(f"v_mov_b32 v{i_}, s{r}")
        A("s_sub_u32 s38, s38, s40")
        A("v_mov_b32 v7, s38")
        for i_, r in enumerate([72, 74, 100, 78, 54, 56]):
            A(f"v_mov_b32 v{8+i_}, s{r}")
        A("s_lshl_b32 s46, s2, 5")
        A("s_add_u32 s47, s46, 0x1010000")
        A("s_add_u32 s46, s46, 0x1000000")
        A("v_mov_b32 v16, 0")
        A(f"v_cmp_eq_u32 vcc, 0, v{L}")
        A("s_and_saveexec_b64 s[48:49], vcc")
        A("s_cbranch_execz L1_done")
        A(f"buffer_store_dwordx4 v[0:3], v16, s[{SRD_P}:{SRD_P+3}], s46 offen")
        A(f"buffer_store_dwordx4 v[4:7], v16, s[{SRD_P}:{SRD_P+3}], s46 offen offset:16")
        A(f"buffer_store_dwordx4 v[8:11], v16, s[{SRD_P}:{SRD_P+3}], s47 offen")
        A(f"buffer_store_dwordx2 v[12:13], v16, s[{SRD_P}:{SRD_P+3}], s47 offen offset:16")
        if opt.get("istamps"):
            A("s_mov_b64 exec, s[48:49]")
            A("s_lshl_b32 s46, s2, 8")
            A("s_add_u32 s46, s46, 0x1040000")
            A(f"v_lshlrev_b32 v16, 2, v{L}")
            A(f"buffer_store_dword v242, v16, s[{SRD_P}:{SRD_P+3}], s46 offen")
        if opt.get("cstamps"):
            A("s_mov_b64 exec, s[48:49]")
            A("s_lshl_b32 s46, s2, 6")
            A("s_add_u32 s46, s46, 0x1030000")
            A(f"v_lshlrev_b32 v16, 2, v{L}")
            A(f"v_cmp_gt_u32 vcc, 16, v{L}")
            A("s_and_saveexec_b64 s[48:49], vcc")
            A(f"buffer_store_dword v242, v16, s[{SRD_P}:{SRD_P+3}], s46 offen")
        A("s_branch L1_done")
    else:
        A("s_branch L1_done")
    A.label("L2_exit")
    if stamps:
        A("s_waitcnt lgkmcnt(0) vmcnt(0)")
        A(f"s_cmp_lg_u32 s{S_W}, 0")
        A("s_cbranch_scc1 L1_done")
        for i_, r in enumerate([60, 62, 64, 66, 68, 70, 72]):
            A(f"v_mov_b32 v{i_}, s{r}")
        A("s_sub_u32 s38, s38, s40")
        A("v_mov_b32 v7, s38")
        A("s_lshl_b32 s46, s2, 5")
        A("s_add_u32 s46, s46, 0x1000000")
        A("v_mov_b32 v16, 0")
        A(f"v_cmp_eq_u32 vcc, 0, v{L}")
        A("s_and_saveexec_b64 s[48:49], vcc")
        A("s_cbranch_execz L1_done")
        A(f"buffer_store_dwordx4 v[0:3], v16, s[{SRD_P}:{SRD_P+3}], s46 offen")
        A(f"buffer_store_dwordx4 v[4:7], v16, s[{SRD_P}:{SRD_P+3}], s46 offen offset:16")

import re
def fix_trans_hazards(lines):
    out = []
    prev_dst = None
    for ln in lines:
        t = ln.strip()
        if prev_dst is not None and t.startswith("v_") and not t.startswith("v_mfma") :
            ops = t.split(None, 1)[1] if " " in t else ""
            srcs = ops.split(",")[1:]
            hit = False
            for s_ in srcs:
                s_ = s_.strip().split()[0] if s_.strip() else ""
                m = re.fullmatch(r"v(\d+)", s_)
                if m and int(m.group(1)) == prev_dst: hit = True
                m = re.fullmatch(r"v\[(\d+):(\d+)\]", s_)
                if m and int(m.group(1)) <= prev_dst <= int(m.group(2)): hit = True
            if hit and not t.startswith(("v_exp", "v_rcp")): out.append("    s_nop 0")
        prev_dst = None
        m = re.match(r"v_(exp|rcp|log|rsq|sqrt)_f32 v(\d+),", t)
        if m: prev_dst = int(m.group(2))
        out.append(ln)
    return out

HEADER2 = """; Fused MHA block (q-projection, attention over the cached K/V, output projection) for gfx950, one launch.
;   0: x  8: k_cache  16: v_cache  24: wq  32: wo  40: d_out  48: d_debug  56: d_ws
;   phase 1  Q^T = wq_h^T x_b^T (v_mfma_f32_16x16x32_bf16, operands staged in LDS by LDS-DMA), scaled by log2(e)/sqrt(128).
;            m is a stand-in for the row max: the max over the first 32 keys (a lower bound of the true max), subtracted through
;            the MFMA C operand.  Run-time check: any row with !(l < 2^40) makes its wave redo its rows with the true row max
"""
KNAME = 'standalone__mha_block_cached__near_ridge_kernel'
def build(opt):
    global K1
    K1 = KNAME
    A = Asm()
    A.raw(HEADER2.rstrip())
    A.raw(f"; @launch grid=(256,1,1) block=(256,1,1) lds={LDS_K1}")
    A.raw('.amdgcn_target "amdgcn-amd-amdhsa--gfx950"')
    gen_k1(A, opt)
    kernel_desc(A, K1, 512, 256)
    A.lines = fix_trans_hazards(A.lines)
    return A.text()

if __name__ == "__main__":
    open("f1s.s", "w").write(build(dict(stamps=True)))
    open("f1.s", "w").write(build(dict()))
    B = dict(stamps=True, npre=4, pdepth=2, psleep=4)
    B = dict(B, pvord="jdt", bar2=True, lag=1, kvrot=False)
    B = dict(B, codewarm=5, cwpos=1)
    B = dict(B, lv=3, bar2=False, dmaspread=True)
    B = dict(B, early=3, npre=6)
    Bp = dict(B, bar2=True, lv=4, dmaspread=False)
    Bm = dict(B, merge=True, convslots=3)
    Bm = dict(B, merge=True, convslots=3, pdepth=1, psleep=0, verbose=True)
    Bm = dict(B, merge=True, convslots=3, pdepth=1, psleep=0)
    V = {
      "p0": dict(Bm),
      "p1": dict(Bm, vmcap=32),
      "p2": dict(Bm, vmcap=24),
      "p3": dict(Bm, vmcap=16),
      "p4": dict(Bm, lv=4),
      "p5": dict(Bm, lv=4, vmcap=24),
    }
    for k_, o_ in V.items(): open(k_ + ".s", "w").write(build(o_))
```
